```python
import torch

def _softmax(x, axis=-1):
    return torch.softmax(x, dim=axis)
def _gelu(x):
    return torch.nn.functional.gelu(x, approximate="tanh")
def _silu(x):
    return torch.nn.functional.silu(x)
def _sigmoid(x):
    return torch.sigmoid(x)
def _layernorm(x, axis=-1, eps=1e-5):
    m = x.mean(dim=axis, keepdim=True)
    v = x.var(dim=axis, keepdim=True, unbiased=False)
    return (x - m) / torch.sqrt(v + eps)
def _scatter_add(tgt, idx, src, axis=0):
    return tgt.clone().index_add_(axis, idx, src)
def _segment_sum(src, seg, n):
    out = torch.zeros((n,) + src.shape[1:], dtype=src.dtype)
    return out.index_add_(0, seg, src)
def _pad(x, pw):
    flat = tuple(v for pair in reversed(pw) for v in pair)
    return torch.nn.functional.pad(x, flat)

kernel_name = 'gather_scatter__cheap_equivariant_egnn__graph'

def setup_inputs():

    _w = (lambda a: (lambda t: t.to(torch.bfloat16) if t.is_floating_point() else t)(torch.as_tensor(a)))
    N, deg, D, De = 25000, 16, 128, max(16, 1)
    E = N * deg
    return {
        "h": _w((lambda *s: torch.randn(*s, dtype=torch.bfloat16) * 0.2)(N, D)),
        "pos": _w((lambda *s: torch.randn(*s, dtype=torch.bfloat16) * 0.4)(N, 3)),
        "e_attr": _w((lambda *s: torch.randn(*s, dtype=torch.bfloat16) * 0.4)(E, De)),
        "src": _w((lambda lo, hi, *s: torch.randint(lo, hi, s))(0, N, E).to(torch.int64)),
        "dst": _w((lambda lo, hi, *s: torch.randint(lo, hi, s))(0, N, E).to(torch.int64)),
        "w_e": _w(0.1 * (lambda *s: torch.randn(*s, dtype=torch.bfloat16) * 0.4)(2 * D + 1 + De, D)),
        "w_x": _w(0.1 * (lambda *s: torch.randn(*s, dtype=torch.bfloat16) * 0.2)(D, 1)),
        "w_h": _w(0.1 * (lambda *s: torch.randn(*s, dtype=torch.bfloat16) * 0.2)(2 * D, D)),
    }

def reference(h, pos, e_attr, src, dst, w_e, w_x, w_h):
    N, D = h.shape[0], h.shape[1]
    diff = pos[dst] - pos[src]
    dist2 = torch.sum(diff * diff, axis=-1, keepdims=True)
    e_in = torch.concatenate([h[dst], h[src], dist2, e_attr], axis=-1)
    m_ij = _silu(e_in @ w_e)
    coord_scale = m_ij @ w_x
    pos_new = pos + _segment_sum(diff * coord_scale, dst, N)
    m_i = _segment_sum(m_ij, dst, N)
    h_new = h + _silu(torch.concatenate([h, m_i], axis=-1) @ w_h)
    return h_new, pos_new
```

```python
import re, sys
TRANS = ('v_exp_f32','v_log_f32','v_rcp_f32','v_rsq_f32','v_sqrt_f32','v_sin_f32','v_cos_f32','v_rcp_iflag_f32')
NODST_S = ('s_cmp','s_cbranch','s_branch','s_waitcnt','s_nop','s_barrier','s_endpgm','s_setprio','s_sleep','s_bitcmp')
def regs_of(tok):
    tok = tok.strip().strip('|').lstrip('-').strip('|')
    m = re.fullmatch(r'([vsa])(\d+)', tok)
    if m: return {m.group(1)+m.group(2)}
    m = re.fullmatch(r'([vsa])\[(\d+):(\d+)\]', tok)
    if m: return {m.group(1)+str(i) for i in range(int(m.group(2)), int(m.group(3))+1)}
    if tok == 'vcc': return {'vcc_lo','vcc_hi'}
    if tok == 'exec': return {'exec_lo','exec_hi'}
    if tok in ('vcc_lo','vcc_hi','exec_lo','exec_hi','m0'): return {tok}
    return set()
class Ins:
    def __init__(s, text):
        s.text = text
        t = text.split(';')[0].strip()
        s.label = None; s.op = None
        if not t: s.kind = 'none'; return
        if t.endswith(':'): s.kind = 'label'; s.label = t[:-1]; return
        if t.startswith('.'): s.kind = 'none'; return
        p = t.split(None, 1); s.op = op = p[0]; rest = p[1] if len(p) > 1 else ''
        ops = [x.strip() for x in re.split(r',(?![^\[]*\])', rest)] if rest else []
        mods = ''
        if ops:
            q = ops[-1].split(None, 1)
            ops[-1] = q[0]; mods = q[1] if len(q) > 1 else ''
        s.mods = mods; s.ops = ops
        R = [regs_of(x) for x in ops]
        U = lambda l: set().union(*l) if l else set()
        s.dst = set(); s.src = set(); s.A = s.B = s.C = set()
        s.load = False; s.states = 1; s.target = None
        s.dpp = bool(re.search(r'row_|quad_perm|wave_|bound_ctrl', mods)) or op.endswith('_dpp')
        s.sdwa = ('dst_sel' in mods and 'dst_sel:DWORD' not in mods) or (bool(re.search(r'op_sel:\[[01,]*1\]', mods)) and not op.startswith('v_pk') and not op.startswith('v_dot'))
        if op.startswith('v_mfma'):
            s.kind = 'mfma'; s.dst = R[0]; s.A, s.B, s.C = R[1], R[2], R[3]; s.src = R[1]|R[2]|R[3]
            s.passes = 8 if '32x32x16' in op else 4
        elif op.startswith('v_'):
            s.kind = 'valu'
            base = re.sub(r'_(e32|e64|dpp|sdwa)$', '', op)
            s.base = base
            s.trans = base in TRANS
            s.dot = base.startswith('v_dot')
            if base == 'v_nop': pass
            elif base in ('v_swap_b32','v_permlane32_swap_b32','v_permlane16_swap_b32'):
                s.dst = R[0]|R[1]; s.src = R[0]|R[1]
            elif re.match(r'v_(add|sub|subrev|addc|subb)_co_u32|v_div_scale', base):
                s.dst = R[0]|R[1]; s.src = U(R[2:])
            else:
                s.dst = set(R[0]); s.src = U(R[1:])
                if base.startswith('v_cmpx'): s.dst |= {'exec_lo','exec_hi'}
                if re.match(r'v_fmac|v_mac|v_dot2c|v_writelane|v_pk_fmac', base) or s.dpp or 'UNUSED_PRESERVE' in mods: s.src |= R[0]
            s.lanesel = R[2] if base in ('v_readlane_b32','v_writelane_b32') else set()
        elif op.startswith('ds_'):
            s.kind = 'ds'
            if re.match(r'ds_read|ds_bpermute|ds_permute|ds_swizzle|ds_.*_rtn', op):
                s.dst = R[0]; s.src = U(R[1:]); s.load = True
            else: s.src = U(R)
            s.usesm0 = 'addtid' in op
        elif op.startswith('buffer_') or op.startswith('global_'):
            s.kind = 'vmem'
            s.lds = bool(re.search(r'\blds\b', mods)) or '_lds_' in op
            s.usesm0 = s.lds
            if 'load' in op and not s.lds: s.dst = R[0]; s.src = U(R[1:]); s.load = True
            elif 'atomic' in op and 'sc0' in mods: s.dst = R[0]; s.src = U(R); s.load = True
            else: s.src = U(R)
            s.wide = set()
            if re.search(r'store_dwordx[34]', op): s.wide = R[0] if op.startswith('buffer') else R[1]
        elif op.startswith('s_'):
            s.kind = 'salu'
            if op.startswith('s_load') or op.startswith('s_memrealtime') or op.startswith('s_memtime') or op.startswith('s_buffer_load'):
                s.kind = 'smem'; s.dst = R[0]; s.src = U(R[1:]); s.load = True
            elif op.startswith(NODST_S):
                s.src = U(R)
                if op == 's_nop': s.states = int(ops[0], 0) + 1
                if op.startswith('s_cbranch') or op == 's_branch': s.target = ops[0]
            else:
                s.dst = set(R[0]); s.src = U(R[1:])
                if 'saveexec' in op: s.dst |= {'exec_lo','exec_hi'}; s.src |= {'exec_lo','exec_hi'}
        else:
            raise SystemExit('cannot parse: ' + text)
def isv(r): return r[0] in 'va' and not r.startswith('vcc')
def need(p, c):
    n = 0
    if p.kind == 'valu':
        sd = {r for r in p.dst if not isv(r)}
        vd = {r for r in p.dst if isv(r)}
        sdx = sd - {'exec_lo','exec_hi'}
        if c.kind == 'valu':
            if sdx & c.src: n = max(n, 2)
            if sd & c.lanesel: n = max(n, 4)
            if vd & c.src:
                if c.dpp: n = max(n, 2)
                if c.base in ('v_readlane_b32','v_readfirstlane_b32'): n = max(n, 1)
                if c.base.startswith('v_permlane'): n = max(n, 2)
                if p.trans and not c.trans: n = max(n, 1)
                if p.sdwa: n = max(n, 1)
            if p.dot and (vd & (c.src | c.dst)): n = max(n, 3)
            if p.sdwa and (vd & c.dst): n = max(n, 1)
            if 'exec_lo' in sd or 'exec_hi' in sd:
                if c.dpp: n = max(n, 5)
                if c.base in ('v_readlane_b32','v_readfirstlane_b32','v_writelane_b32') or c.base.startswith('v_permlane'): n = max(n, 4)
                if c.src & {'exec_lo','exec_hi'}: n = max(n, 2)
        elif c.kind == 'mfma':
            if vd & c.src: n = max(n, 3 if p.dot else 2)
            if 'exec_lo' in sd or 'exec_hi' in sd: n = max(n, 4)
        elif c.kind == 'vmem':
            if sd & c.src: n = max(n, 5)
            if p.dot and (vd & c.src): n = max(n, 3)
        elif c.kind == 'ds':
            if p.dot and (vd & c.src): n = max(n, 3)
    elif p.kind == 'mfma':
        big = {8:12, 4:8}[p.passes]; ov = {8:10, 4:6}[p.passes]; war = {8:7, 4:3}[p.passes]
        if c.kind == 'mfma':
            if p.dst & (c.A | c.B): n = max(n, big)
            if p.dst & c.C and not (p.dst == c.C and p.passes == c.passes): n = max(n, ov)
        elif c.kind in ('valu','ds','vmem'):
            if p.dst & (c.src | c.dst): n = max(n, big)
            if p.C & c.dst: n = max(n, war)
    elif p.kind == 'salu':
        if 'm0' in p.dst and c.kind in ('ds','vmem') and c.usesm0: n = max(n, 1)
    elif p.kind == 'vmem':
        if p.wide and (p.wide & c.dst): n = max(n, 2 if c.kind in ('valu','mfma') else 1)
    return n
def build(lines):
    I = [Ins(l) for l in lines]
    lab = {x.label: i for i, x in enumerate(I) if x.kind == 'label'}
    pred = [[] for _ in I]; succ = [[] for _ in I]
    for i, x in enumerate(I):
        ft = not (x.op in ('s_branch','s_endpgm'))
        if ft and i+1 < len(I): succ[i].append(i+1); pred[i+1].append(i)
        if x.kind == 'salu' and x.target:
            j = lab[x.target]; succ[i].append(j); pred[j].append(i)
    return I, pred, succ
def fix_hazards(lines, log=None):
    lines = list(lines); total = 0
    while True:
        I, pred, succ = build(lines)
        ins = {}
        for i, c in enumerate(I):
            if c.kind in ('none','label'): continue
            worst = 0; why = None
            stack = [(p, 0) for p in pred[i]]; seen = {}
            while stack:
                j, d = stack.pop()
                if d >= 12 or seen.get(j, 99) <= d: continue
                seen[j] = d
                p = I[j]
                if p.kind in ('none','label'):
                    stack += [(q, d) for q in pred[j]]; continue
                n = need(p, c)
                if n - d > worst: worst = n - d; why = p.text
                stack += [(q, d + p.states + ins.get(j, 0)) for q in pred[j]]
            if worst > 0:
                ins[i] = worst
                if log is not None: log.append(f"nop {worst} before [{c.text.strip()}] after [{why.strip()}]")
        if not ins: return lines, total
        out = []
        for i, l in enumerate(lines):
            if i in ins: out.append(f"s_nop {ins[i]-1}"); total += ins[i]
            out.append(l)
        lines = out
def check_waits(lines, maxstates=400000):
    I, pred, succ = build(lines)
    errs = {}
    stack = [(0, (), ())]; seen = set()
    while stack:
        st = stack.pop()
        if st in seen: continue
        seen.add(st)
        if len(seen) > maxstates: print("check_waits: too many states"); break
        i, vq, lq = st; x = I[i]
        if x.kind not in ('none','label'):
            if 'NOWAITCHK' not in x.text:
                touched = x.src | x.dst
                for q in (vq, lq):
                    for j in q:
                        if I[j].dst & touched:
                            if x.load and not (I[j].dst & x.src) and ((x.kind == 'vmem') == (I[j].kind == 'vmem')) and x.kind != 'smem' and I[j].kind != 'smem': continue
                            errs[(i, j)] = f"line {i}: [{x.text.strip()}] touches pending result of line {j}: [{I[j].text.strip()}]"
            if x.op == 's_waitcnt':
                t = x.text.split(';')[0]
                m = re.search(r'vmcnt\((\d+)\)', t)
                if m:
                    n = int(m.group(1)); vq = vq[len(vq)-n:] if n < len(vq) else vq
                    if n == 0: vq = ()
                m = re.search(r'lgkmcnt\((\d+)\)', t)
                if m:
                    n = int(m.group(1))
                    if n == 0: lq = ()
                    else:
                        dsq = [j for j in lq if I[j].kind != 'smem']; keep = set(dsq[max(0,len(dsq)-n):])
                        lq = tuple(j for j in lq if I[j].kind == 'smem' or j in keep)
            elif x.kind == 'vmem': vq = (vq + (i,))[-63:]
            elif x.kind in ('ds','smem'): lq = lq + (i,)
            if len(lq) > 40: lq = lq[-40:]
        for s_ in succ[i]: stack.append((s_, vq, lq))
    return list(errs.values())
```

```python
class Asm:
    def __init__(self):
        self.lines = []
    def __call__(self, s=""):
        for l in s.split("\n"):
            self.lines.append(l)
    def label(self, n): self.lines.append(n + ":")
    def text(self): return "\n".join(self.lines) + "\n"

def kernel_header(name):
    return f""".text
.globl {name}
.p2align 8
.type {name},@function
{name}:"""

def kernel_desc(name, vgpr, sgpr=102, accum=None, kernarg=88):
    if accum is None: accum = (vgpr + 3) // 4 * 4
    return f""".section .rodata,"a"
.p2align 6
.amdhsa_kernel {name}
  .amdhsa_next_free_vgpr {vgpr}
  .amdhsa_next_free_sgpr {sgpr}
  .amdhsa_accum_offset {accum}
  .amdhsa_group_segment_fixed_size 0
  .amdhsa_kernarg_size {kernarg}
  .amdhsa_user_sgpr_count 2
  .amdhsa_user_sgpr_kernarg_segment_ptr 1
  .amdhsa_system_sgpr_workgroup_id_x 1
.end_amdhsa_kernel
"""

OFF_TS=0x2000000
class TS:
    def __init__(s, a, on, pairs, kidx, wsptr, wave, lane, srd, tmpv):
        s.a=a; s.on=on; s.pairs=pairs; s.k=kidx; s.ws=wsptr; s.wave=wave; s.lane=lane; s.srd=srd; s.v=tmpv; s.names=[]; s.only=None
    def __call__(s, name):
        if not s.on: return
        if name.startswith('_'):
            if not s.only or name[1:] not in s.only: return
            name=name[1:]
        elif s.only and name not in s.only and name not in ('start','end'): return
        if name in s.names: i=s.names.index(name)
        else: i=len(s.names); s.names.append(name)
        p=s.pairs[i]; s.a(f"{'s_memtime' if s.on=='C' else 's_memrealtime'} s[{p}:{p+1}]")
    def dump(s, waitvm=True):
        if not s.on: return
        a=s.a; v=s.v; d=s.srd
        if waitvm: a("s_waitcnt vmcnt(0)")
        s("end")
        a("s_mov_b64 exec, -1\ns_waitcnt lgkmcnt(0)")
        a(f"v_mov_b32 v{v}, 0")
        if s.on == 'D':
            sel = (["~start","start","dst","hW","east","end"], ["~start","start","tab","b1","b2","b3","loop","tail","bar","end"])[s.k]
            base = (0,6)[s.k]
            a(f"s_load_dwordx2 s[{d}:{d+1}], s[0:1], 72")
            for j,n in enumerate(sel):
                p=s.pairs[s.names.index(n.lstrip('~'))]
                if n[0]=='~': a(f"s_not_b32 s{p+1}, s{p}\nv_writelane_b32 v{v}, s{p+1}, {base+j}")
                else: a(f"v_writelane_b32 v{v}, s{p}, {base+j}")
            a(f"""s_waitcnt lgkmcnt(0)
s_add_u32 s{d}, s{d}, {512*(1-s.k)}
s_addc_u32 s{d+1}, s{d+1}, 0
s_mov_b32 s{d+2}, 64
s_mov_b32 s{d+3}, 0x20000
v_lshlrev_b32 v{v+1}, 2, v{s.lane}
buffer_atomic_umax v{v}, v{v+1}, s[{d}:{d+3}], 0 offen""")
            return
        for i,n in enumerate(s.names): a(f"v_writelane_b32 v{v}, s{s.pairs[i]}, {i}")
        a(f"""s_add_u32 s{d}, s{s.ws}, {OFF_TS+s.k*0x40000}
s_addc_u32 s{d+1}, s{s.ws+1}, 0
s_mov_b32 s{d+2}, 0x40000
s_mov_b32 s{d+3}, 0x20000
s_lshl_b32 s2, s2, 3
s_add_u32 s2, s2, s{s.wave}
s_lshl_b32 s2, s2, 6
v_lshlrev_b32 v{v+1}, 2, v{s.lane}
v_cmp_gt_u32 vcc, 16, v{s.lane}
s_mov_b64 exec, vcc
buffer_store_dword v{v}, v{v+1}, s[{d}:{d+3}], s2 offen""")

def cap(fn):
    t=Asm(); fn(t); return [l for l in t.lines if l.strip()]
def ilv(a, chain, fill, k):
    fill=list(fill)
    for i,l in enumerate(chain):
        a(l)
        n=k if isinstance(k,int) else (k[i] if i<len(k) else 0)
        for _ in range(n):
            if fill: a(fill.pop(0))
    return fill
```

```python
from asmlib import *
OFF_Q=0; OFF_EAP=0x800000; OFF_META=0x1500000; OFF_TAB=0x1700000; OFF_POS=0x1780000; OFF_WF=0x1800000
WF_WD=0; WF_W1=32768; WF_W2=65536; WF_WA=98304; WF_WDI=102400; WF_WX=103424
WS_USED=OFF_WF+0x20000
LOG2E='0x3fb8aa3b'
BIG='0x40000000'
assert all((d*42800)>>22 == d//98 for d in range(25088))
assert all((n*147)>>10 == n//7 for n in range(98))

def srd(a, d, b, n, off=0):
    if off:
        a(f"s_add_u32 s{d}, s{b}, {off}\ns_addc_u32 s{d+1}, s{b+1}, 0")
    else:
        a(f"s_mov_b32 s{d}, s{b}\ns_mov_b32 s{d+1}, s{b+1}")
    a(f"s_mov_b32 s{d+2}, {n}\ns_mov_b32 s{d+3}, 0x20000")

def wave_scan(a, v):
    for sh in (1,2,4,8):
        a(f"v_add_u32_dpp v{v}, v{v}, v{v} row_shr:{sh} row_mask:0xf bank_mask:0xf bound_ctrl:1")
    a(f"v_add_u32_dpp v{v}, v{v}, v{v} row_bcast:15 row_mask:0xa bank_mask:0xf")
    a(f"v_add_u32_dpp v{v}, v{v}, v{v} row_bcast:31 row_mask:0xc bank_mask:0xf")

L_EA=0; L_H=51200; L_W=83968; L_ML=116736; L_INV=123136; L_CNT=126336; L_START=127360; K1_LDS=128384

def gen_k1(name, ST="", opt={}):
    a = Asm(); ts=TS(a, opt.get("TS"), list(range(68,100,2)), 0, 24, 3, 2, 32, 4)
    E=f"L_{name}"
    a(f"s_cmp_ge_u32 s2, 254\ns_cbranch_scc1 {E}_end")
    ts("start")
    a("s_load_dwordx16 s[8:23], s[0:1], 0\ns_load_dwordx2 s[24:25], s[0:1], 80")
    a("v_lshrrev_b32 v1, 6, v0\nv_and_b32 v2, 63, v0\nv_readfirstlane_b32 s3, v1")
    a("s_waitcnt lgkmcnt(0)")
    srd(a, 28, 24, WS_USED)
    a(f"s_cmp_ge_u32 s2, 250\ns_cbranch_scc1 {E}_prep")
    srd(a, 32, 16, 1600000)
    srd(a, 36, 14, 1600000)
    srd(a, 40, 10, 150000)
    srd(a, 44, 8, 6400000)
    srd(a, 48, 18, 32768, 128*256)
    srd(a, 52, 12, 12800000)
    a(f"""s_mul_i32 s4, s2, 6400
v_lshl_add_u32 v3, v0, 4, s4
v_mov_b32 v5, {BIG}
v_cmp_gt_u32 vcc, 400, v0
s_mov_b64 s[26:27], vcc
v_cndmask_b32 v3, v5, v3, vcc
buffer_load_dwordx4 v[8:11], v3, s[32:35], 0 offen
buffer_load_dwordx4 v[12:15], v3, s[36:39], 0 offen
s_mul_i32 s4, s2, 600
v_lshrrev_b32 v4, 2, v0
v_mul_u32_u24 v4, 6, v4
v_and_b32 v6, 3, v0
v_lshl_add_u32 v4, v6, 1, v4
v_add_u32 v4, s4, v4
v_cndmask_b32 v4, v5, v4, vcc
v_cmp_eq_u32 vcc, 3, v6
v_cndmask_b32 v4, v4, v5, vcc
buffer_load_ushort v16, v4, s[40:43], 0 offen""")
    a(f"""v_lshrrev_b32 v17, 4, v2
s_and_b32 s5, s3, 3
s_lshl_b32 s5, s5, 2
v_add_u32 v18, s5, v17
v_and_b32 v19, 15, v2
v_xor_b32 v18, v18, v19
v_lshlrev_b32 v18, 4, v18
v_lshl_add_u32 v18, v17, 8, v18
s_mul_i32 s6, s2, 25600
s_lshl_b32 s7, s3, 10
s_add_u32 s6, s6, s7
s_cmp_lg_u32 s3, 0
s_cbranch_scc1 {E}_nohx
s_add_u32 s56, s6, {24*1024}
s_mov_b32 m0, {L_H+24*1024}
s_nop 0
buffer_load_dwordx4 v18, s[44:47], s56 offen lds""")
    a.label(f"{E}_nohx")
    for m in range(3):
        a(f"s_add_u32 m0, s7, {L_H+m*8192}\ns_add_u32 s56, s6, {m*8192}\nbuffer_load_dwordx4 v18, s[44:47], s56 offen lds")
    a(f"""v_lshlrev_b32 v20, 2, v17
v_xor_b32 v20, v20, v19
v_lshlrev_b32 v20, 4, v20
v_lshl_add_u32 v20, v17, 8, v20""")
    for m in range(4):
        a(f"s_add_u32 m0, s7, {L_W+m*8192}\ns_add_u32 s56, s7, {m*8192}\nbuffer_load_dwordx4 v20, s[48:51], s56 offen lds")
    a("v_lshlrev_b32 v21, 4, v2\ns_mul_i32 s57, s2, 51200\ns_add_u32 s57, s57, s7")
    for m in range(6):
        a(f"s_add_u32 m0, s7, {L_EA+m*8192}\ns_add_u32 s56, s57, {m*8192}\nbuffer_load_dwordx4 v21, s[52:55], s56 offen lds")
    a(f"""s_cmp_ge_u32 s3, 2
s_cbranch_scc1 {E}_noex
s_add_u32 m0, s7, {L_EA+6*8192}
s_add_u32 s56, s57, {6*8192}
buffer_load_dwordx4 v21, s[52:55], s56 offen lds""")
    a.label(f"{E}_noex")
    a(f"v_lshlrev_b32 v22, 2, v0\nv_add_u32 v23, {L_CNT}, v22\nv_mov_b32 v24, 0\nds_write_b32 v23, v24\nv_mov_b32 v25, 1")
    ts("issued")
    a("s_mov_b32 s58, 42800\ns_waitcnt lgkmcnt(0)\ns_barrier\ns_waitcnt vmcnt(14)")
    ts("dst")
    for i in range(4):
        d=8+i; s=12+i; b=26+i
        a(f"""v_mul_u32_u24 v{b}, s58, v{d}
v_lshrrev_b32 v{b}, 22, v{b}
v_mul_u32_u24 v30, 98, v{b}
v_sub_u32 v{d}, v{d}, v30
v_mul_u32_u24 v30, 147, v{d}
v_lshrrev_b32 v30, 10, v30
v_mul_u32_u24 v31, 7, v30
v_sub_u32 v{d}, v{d}, v31
v_add_u32 v31, 5, v30
v_lshrrev_b32 v31, 4, v31
v_add_u32 v30, v30, v31
v_lshl_add_u32 v30, v30, 3, v{d}
v_lshl_or_b32 v{s}, v30, 20, v{s}
v_and_b32 v{d}, 3, v{d}
v_lshl_or_b32 v{s}, v{d}, 16, v{s}
v_lshlrev_b32 v{b}, 2, v{b}
v_add_u32 v{b}, {L_CNT}, v{b}""")
    a("s_mov_b64 exec, s[26:27]")
    for i in range(4): a(f"ds_add_rtn_u32 v{8+i}, v{26+i}, v25")
    a("s_mov_b64 exec, -1\ns_waitcnt lgkmcnt(0)\ns_barrier")
    ts("cnt")
    a(f"""v_lshlrev_b32 v30, 4, v2
v_add_u32 v30, {L_CNT}, v30
ds_read_b128 v[32:35], v30
s_waitcnt lgkmcnt(0)
v_add_u32 v38, v32, v33
v_add_u32 v39, v38, v34
v_add_u32 v31, v39, v35
v_mov_b32 v40, v31""")
    wave_scan(a, 31)
    a(f"""v_sub_u32 v36, v31, v40
v_add_u32 v37, v36, v32
v_add_u32 v38, v36, v38
v_add_u32 v39, v36, v39
ds_write_b128 v30, v[36:39] offset:1024""")
    for i in range(4): a(f"ds_read_b32 v{40+i}, v{26+i} offset:1024")
    a(f"s_cmp_lg_u32 s3, 7\ns_cbranch_scc1 {E}_notab")
    for i in range(4): a(f"v_lshl_or_b32 v{32+i}, v{32+i}, 16, v{36+i}")
    a(f"s_lshl_b32 s56, s2, 10\ns_add_u32 s56, s56, {OFF_TAB}\nbuffer_store_dwordx4 v[32:35], v21, s[28:31], s56 offen {ST}")
    a.label(f"{E}_notab")
    a("v_lshlrev_b32 v44, 7, v0\ns_waitcnt lgkmcnt(0)\ns_mov_b64 exec, s[26:27]")
    for i in range(4):
        a(f"""v_add_u32 v{40+i}, v{40+i}, v{8+i}
v_lshlrev_b32 v45, 2, v{40+i}
v_add_u32 v45, {L_ML}, v45
ds_write_b32 v45, v{12+i}
v_lshlrev_b32 v46, 1, v{40+i}
v_add_u32 v46, {L_INV}, v46
v_add_u32 v47, {32*i}, v44
ds_write_b16 v46, v47""")
    a(f"""s_waitcnt vmcnt(13)
v_lshlrev_b32 v16, 16, v16
s_mul_i32 s56, s2, 1600
s_add_u32 s56, s56, {OFF_POS}
buffer_store_dword v16, v22, s[28:31], s56 offen
s_mov_b64 exec, -1""")
    a(f"""s_lshr_b32 s59, s3, 1
s_and_b32 s60, s3, 1
v_and_b32 v48, 31, v2
v_lshrrev_b32 v49, 5, v2
v_xor_b32 v50, v49, v19
v_lshlrev_b32 v50, 4, v50
v_lshl_add_u32 v50, v48, 8, v50
s_lshl_b32 s56, s59, 13
s_add_u32 s56, s56, {L_H}
v_add_u32 v50, s56, v50""")
    a(f"""v_bfe_u32 v51, v2, 2, 2
v_lshl_add_u32 v52, v49, 3, v51
v_lshlrev_b32 v52, 8, v52
v_and_b32 v53, 1, v17
v_lshlrev_b32 v53, 1, v53
v_bfe_u32 v54, v2, 1, 1
v_add_u32 v53, v53, v54
v_lshl_add_u32 v52, v53, 4, v52
v_and_b32 v54, 1, v2
v_lshl_add_u32 v52, v54, 3, v52
v_add_u32 v52, {L_W}, v52
s_lshl_b32 s56, s60, 1
v_xor_b32 v53, s56, v51
v_xor_b32 v54, 1, v53
v_lshl_add_u32 v53, v53, 6, v52
v_lshl_add_u32 v54, v54, 6, v52""")
    a("s_waitcnt vmcnt(7) lgkmcnt(0)\ns_barrier")
    ts("hW")
    a(f"v_lshlrev_b32 v44, 4, v0\nv_add_u32 v45, {L_ML}, v44\nds_read_b128 v[8:11], v45")
    a(f"v_lshrrev_b32 v46, 1, v0\nv_lshlrev_b32 v46, 1, v46\nv_add_u32 v46, {L_INV}, v46")
    for i in range(7): a(f"ds_read_u16 v{26+i}, v46 offset:{i*512}")
    a(f"s_mov_b32 s56, {OFF_META}\ns_waitcnt lgkmcnt(0)\nbuffer_store_dwordx4 v[8:11], v3, s[28:31], s56 offen {ST}")
    for k in range(8):
        if k == 0: a(f"ds_read_b128 v[64:67], v50")
        else: a(f"v_xor_b32 v55, {32*k}, v50\nds_read_b128 v[{64+4*k}:{67+4*k}], v55")
        for z in range(2):
            for u in range(2):
                r = 96+8*k+4*z+2*u
                a(f"ds_read_b64_tr_b16 v[{r}:{r+1}], v{53+z} offset:{k*4096+u*1024}")
        if k >= 2:
            kk = k-2
            a("s_waitcnt lgkmcnt(10)")
            for z in range(2):
                D = 160+16*z; C = f"v[{D}:{D+15}]" if kk else "0"
                a(f"v_mfma_f32_32x32x16_bf16 v[{D}:{D+15}], v[{64+4*kk}:{67+4*kk}], v[{96+8*kk+4*z}:{99+8*kk+4*z}], {C}")
    for kk in (6,7):
        a(f"s_waitcnt lgkmcnt({5 if kk==6 else 0})")
        for z in range(2):
            D = 160+16*z
            a(f"v_mfma_f32_32x32x16_bf16 v[{D}:{D+15}], v[{64+4*kk}:{67+4*kk}], v[{96+8*kk+4*z}:{99+8*kk+4*z}], v[{D}:{D+15}]")
    ts("gemm")
    a("v_and_b32 v55, 1, v0\nv_lshlrev_b32 v55, 4, v55")
    for i in range(7): a(f"v_add_u32 v{26+i}, v{26+i}, v55")
    a(f"""s_add_u32 s56, s2, 1
s_mul_i32 s56, s56, 25600
s_mov_b32 s32, s24
s_mov_b32 s33, s25
s_mov_b32 s34, s56
s_mov_b32 s35, 0x20000
s_mul_i32 s56, s2, 25600
s_lshl_b32 s57, s59, 13
s_add_u32 s56, s56, s57
s_lshl_b32 s57, s60, 7
s_add_u32 s56, s56, s57
v_lshlrev_b32 v56, 2, v48
v_lshl_add_u32 v56, v49, 10, v56
v_add_u32 v56, s56, v56
s_mov_b32 s62, {LOG2E}
s_mov_b32 s63, {LOG2E}
s_mov_b32 s64, 0x7fff0000
s_movk_i32 s65, 4096""")
    for r in range(0,16,2):
        a(f"v_pk_mul_f32 v[{160+r}:{161+r}], v[{160+r}:{161+r}], s[62:63]\nv_pk_mul_f32 v[{176+r}:{177+r}], v[{176+r}:{177+r}], s[62:63]")
    for r in range(16):
        lo=160+r; hi=176+r
        a(f"""v_cvt_pk_bf16_f32 v{lo}, v{lo}, v{hi}
v_and_b32 v{hi}, 0x7fffffff, v{hi}
v_add_u32 v{hi}, 0x8000, v{hi}
v_sub_u32_sdwa v{hi}, v{hi}, v{lo} clamp dst_sel:DWORD dst_unused:UNUSED_PAD src0_sel:DWORD src1_sel:WORD_0
v_bfi_b32 v{lo}, s64, v{hi}, v{lo}""")
        q = r>>2
        a(f"buffer_store_dword v{lo}, v56, s[32:35], {'s65' if q>>1 else '0'} offen offset:{(r&3)*256+(q&1)*2048} {ST}")
    ts("qst")
    a("s_waitcnt vmcnt(18)\ns_barrier")
    ts("ea")
    for i in range(6): a(f"ds_read_b128 v[{64+4*i}:{67+4*i}], v{26+i}")
    a(f"s_mul_i32 s56, s2, 51200\ns_add_u32 s56, s56, {OFF_EAP}")
    a(f"s_cmp_ge_u32 s3, 2\ns_cbranch_scc1 {E}_noe7")
    a(f"ds_read_b128 v[88:91], v32\ns_add_u32 s57, s56, {6*8192}\ns_waitcnt lgkmcnt(0)\nbuffer_store_dwordx4 v[88:91], v44, s[28:31], s57 offen {ST}")
    a.label(f"{E}_noe7")
    for i in range(6):
        a(f"s_add_u32 s57, s56, {i*8192}\ns_waitcnt lgkmcnt({5-i})\nbuffer_store_dwordx4 v[{64+4*i}:{67+4*i}], v44, s[28:31], s57 offen {ST}")
    ts("east"); ts.dump()
    a("s_endpgm")
    a.label(f"{E}_prep")
    a(f"""v_and_b32 v48, 31, v2
v_lshrrev_b32 v49, 5, v2
v_lshlrev_b32 v21, 4, v2
s_cmp_eq_u32 s2, 253
s_cbranch_scc1 {E}_small""")
    a("""s_cmp_eq_u32 s2, 250
s_cselect_b32 s32, s18, s22
s_cselect_b32 s33, s19, s23
s_mov_b32 s34, 65536
s_mov_b32 s35, 0x20000
s_cmp_eq_u32 s2, 252
s_cselect_b32 s4, 32768, 0
s_lshl_b32 s5, s3, 12
s_add_u32 s4, s4, s5
s_mov_b32 m0, s5
s_nop 0""")
    for m in range(4): a(f"buffer_load_dwordx4 v21, s[32:35], s4 offen offset:{m*1024} lds")
    a(f"""s_and_b32 s6, s3, 3
s_lshl_b32 s6, s6, 13
s_lshr_b32 s7, s3, 2
s_lshl_b32 s7, s7, 7
s_add_u32 s6, s6, s7
s_cmp_eq_u32 s2, 250
s_cselect_b32 s56, 1, 2
s_cselect_b32 s57, 64, 2
s_cmp_eq_u32 s2, 252
s_cselect_b32 s58, 10, 11
v_lshlrev_b32 v50, s56, v48
v_lshlrev_b32 v51, s58, v49
v_add3_u32 v50, v50, v51, s6
v_add_u32 v51, s57, v50
s_sub_u32 s59, s2, 250
s_lshl_b32 s59, s59, 15
s_add_u32 s59, s59, s5
s_add_u32 s59, s59, {OFF_WF}
s_mov_b32 s60, 0x05040100
s_waitcnt vmcnt(0)
s_barrier
s_cmp_eq_u32 s2, 252
s_cbranch_scc1 {E}_w2""")
    def frags(w2):
        for m in range(4):
            for e in range(8):
                eo = ((e&3)+8*(e>>2)) if w2 else e
                a(f"ds_read_u16 v{64+8*m+e}, v{50+(m&1)} offset:{((m>>1)*16+eo)*256}")
            a("s_waitcnt lgkmcnt(0)")
            for d in range(4): a(f"v_perm_b32 v{64+8*m+d}, v{64+8*m+2*d+1}, v{64+8*m+2*d}, s60")
    frags(False)
    for m in range(4): a(f"buffer_store_dwordx4 v[{64+8*m}:{67+8*m}], v21, s[28:31], s59 offen offset:{m*1024}")
    a("s_endpgm")
    a.label(f"{E}_w2")
    frags(True)
    a(f"s_bitcmp1_b32 s3, 1\ns_cbranch_scc1 {E}_w2b\nv_lshlrev_b32 v22, 2, v2")
    for m in range(4):
        for d in range(4): a(f"buffer_store_dword v{64+8*m+d}, v22, s[28:31], s59 offen offset:{m*1024+d*256}")
    a("s_endpgm")
    a.label(f"{E}_w2b")
    for m in range(4): a(f"buffer_store_dwordx4 v[{64+8*m}:{67+8*m}], v21, s[28:31], s59 offen offset:{m*1024}")
    a("s_endpgm")
    a.label(f"{E}_small")
    srd(a, 32, 18, 17*256, 256*256)
    srd(a, 36, 20, 256)
    a(f"""s_and_b32 s4, s3, 3
s_lshl_b32 s5, s4, 6
v_lshl_add_u32 v50, v48, 1, s5
s_mov_b32 s62, {LOG2E}
s_cmp_ge_u32 s3, 4
s_cbranch_scc1 {E}_wdi
v_lshl_add_u32 v51, v49, 11, v50""")
    for e in range(8): a(f"buffer_load_ushort v{64+e}, v51, s[32:35], 0 offen offset:{256+e*256}")
    a("""v_and_b32 v52, 0x38, v2
v_lshlrev_b32 v52, 2, v52
v_bfe_u32 v53, v2, 1, 1
v_lshl_add_u32 v52, v53, 4, v52
v_bfe_u32 v53, v2, 2, 1
v_lshl_add_u32 v52, v53, 3, v52
v_and_b32 v53, 1, v2
v_lshl_add_u32 v52, v53, 2, v52
buffer_load_dword v72, v52, s[36:39], 0 offen
s_waitcnt vmcnt(0)""")
    for e in range(8): a(f"v_lshlrev_b32 v{64+e}, 16, v{64+e}\nv_mul_f32 v{64+e}, s62, v{64+e}")
    for d in range(4): a(f"v_cvt_pk_bf16_f32 v{64+d}, v{64+2*d}, v{65+2*d}")
    a(f"""s_lshl_b32 s5, s4, 10
s_add_u32 s5, s5, {OFF_WF+WF_WA}
buffer_store_dwordx4 v[64:67], v21, s[28:31], s5 offen
v_lshlrev_b32 v22, 2, v2
s_mov_b32 s5, {OFF_WF+WF_WX}
buffer_store_dword v72, v22, s[28:31], s5 offen
s_endpgm""")
    a.label(f"{E}_wdi")
    a(f"""buffer_load_ushort v64, v50, s[32:35], 0 offen
v_cmp_gt_u32 vcc, 32, v2
v_lshlrev_b32 v22, 2, v2
s_lshl_b32 s5, s4, 8
s_add_u32 s5, s5, {OFF_WF+WF_WDI}
s_waitcnt vmcnt(0)
v_lshlrev_b32 v64, 16, v64
v_mul_f32 v64, s62, v64
v_cvt_pk_bf16_f32 v64, 0, v64
v_cndmask_b32 v64, 0, v64, vcc
buffer_store_dword v64, v22, s[28:31], s5 offen""")
    a.label(f"{E}_end")
    a("s_endpgm")
    gen_k1.names=ts.names
    return a.lines, 192, K1_LDS
```

```python
from asmlib import *
OFF_Q=0; OFF_EAP=0x800000; OFF_REC=0x1500000; OFF_TAB=0x1A00000; OFF_WF=0x1A80000
WF_WD=0; WF_W1=32768; WF_W2=65536; WF_WA=98304; WF_WDI=102400; WF_WX=103424
WS_USED=OFF_WF+0x20000
import os
NEG=int(os.environ.get('NEG','1'))
LOG2E='0xbfb8aa3b' if NEG else '0x3fb8aa3b'
LN2='0xbf317218' if NEG else '0x3f317218'
SG='' if NEG else '-'
BIG='0x40000000'
DBIAS=2048
assert all((d*42800)>>22 == d//98 for d in range(25088))
assert all((n*147)>>10 == n//7 for n in range(98))

def srd(a, d, b, n, off=0):
    if off:
        a(f"s_add_u32 s{d}, s{b}, {off}\ns_addc_u32 s{d+1}, s{b+1}, 0")
    else:
        a(f"s_mov_b32 s{d}, s{b}\ns_mov_b32 s{d+1}, s{b+1}")
    a(f"s_mov_b32 s{d+2}, {n}\ns_mov_b32 s{d+3}, 0x20000")

def wave_scan(a, v):
    for sh in (1,2,4,8):
        a(f"v_add_u32_dpp v{v}, v{v}, v{v} row_shr:{sh} row_mask:0xf bank_mask:0xf bound_ctrl:1")
    a(f"v_add_u32_dpp v{v}, v{v}, v{v} row_bcast:15 row_mask:0xa bank_mask:0xf")
    a(f"v_add_u32_dpp v{v}, v{v}, v{v} row_bcast:31 row_mask:0xc bank_mask:0xf")

def gen_k1(name, ST="", opt={}):
    DM = opt.get('DM')
    L_REC=0; L_CNT=19200; L_START=20224; L_INV=21248; L_H=24576; L_W=L_H+25600+0; L_W=(L_W+1023)//1024*1024; L_EA=L_W+32768
    K1_LDS = L_EA if DM else L_EA+51200
    a = Asm(); ts=TS(a, opt.get("TS"), list(range(68,100,2)), 0, 24, 3, 2, 32, 4)
    E=f"L_{name}"
    a(f"s_cmp_ge_u32 s2, 254\ns_cbranch_scc1 {E}_end")
    ts("start")
    a("s_load_dwordx16 s[8:23], s[0:1], 0\ns_load_dwordx2 s[24:25], s[0:1], 80")
    a("v_lshrrev_b32 v1, 6, v0\nv_and_b32 v2, 63, v0\nv_readfirstlane_b32 s3, v1")
    a(f"""s_mul_i32 s4, s2, 6400
v_lshl_add_u32 v3, v0, 4, s4
v_mov_b32 v5, {BIG}
v_cmp_gt_u32 s[26:27], 400, v0""".replace("v_cmp_gt_u32 s[26:27], 400, v0","v_cmp_gt_u32 vcc, 400, v0\ns_mov_b64 s[26:27], vcc"))
    a(f"""v_cndmask_b32 v3, v5, v3, vcc
v_lshlrev_b32 v22, 2, v0
v_mov_b32 v24, 0
ds_write_b32 v22, v24 offset:{L_CNT}
s_mov_b32 s34, 1600000
s_mov_b32 s35, 0x20000
s_mov_b32 s38, 1600000
s_mov_b32 s39, 0x20000
s_cmp_ge_u32 s2, 250
s_waitcnt lgkmcnt(0)
s_cbranch_scc1 {E}_prep
s_mov_b32 s32, s16
s_mov_b32 s33, s17
s_mov_b32 s36, s14
s_mov_b32 s37, s15
buffer_load_dwordx4 v[8:11], v3, s[32:35], 0 offen
buffer_load_dwordx4 v[12:15], v3, s[36:39], 0 offen
s_barrier""")
    srd(a, 28, 24, WS_USED)
    srd(a, 40, 10, 150000)
    srd(a, 44, 8, 6400000)
    srd(a, 48, 18, 32768, 128*256)
    if not DM: srd(a, 52, 12, 12800000)
    a(f"""v_lshrrev_b32 v17, 4, v2
s_and_b32 s5, s3, 3
s_lshl_b32 s5, s5, 2
v_add_u32 v18, s5, v17
v_and_b32 v19, 15, v2
v_xor_b32 v18, v18, v19
v_lshlrev_b32 v18, 4, v18
v_lshl_add_u32 v18, v17, 8, v18
s_mul_i32 s6, s2, 25600
s_lshl_b32 s7, s3, 10
s_add_u32 s6, s6, s7
s_cmp_lg_u32 s3, 0
s_cbranch_scc1 {E}_nohx
s_add_u32 s56, s6, {24*1024}
s_mov_b32 m0, {L_H+24*1024}
s_nop 0
buffer_load_dwordx4 v18, s[44:47], s56 offen lds""")
    a.label(f"{E}_nohx")
    for m in range(3):
        a(f"s_add_u32 m0, s7, {L_H+m*8192}\ns_add_u32 s56, s6, {m*8192}\nbuffer_load_dwordx4 v18, s[44:47], s56 offen lds")
    a(f"""v_lshlrev_b32 v20, 2, v17
v_xor_b32 v20, v20, v19
v_lshlrev_b32 v20, 4, v20
v_lshl_add_u32 v20, v17, 8, v20""")
    def wdma():
        for m in range(4):
            a(f"s_add_u32 m0, s7, {L_W+m*8192}\ns_add_u32 s56, s7, {m*8192}\nbuffer_load_dwordx4 v20, s[48:51], s56 offen lds")
    a(f"""s_lshr_b32 s59, s3, 1
s_and_b32 s60, s3, 1
v_and_b32 v48, 31, v2
v_lshrrev_b32 v49, 5, v2
v_xor_b32 v50, v49, v19
v_lshlrev_b32 v50, 4, v50
v_lshl_add_u32 v50, v48, 8, v50
s_lshl_b32 s56, s59, 13
s_add_u32 s56, s56, {L_H}
v_add_u32 v50, s56, v50""")
    a(f"""v_bfe_u32 v51, v2, 2, 2
v_lshl_add_u32 v52, v49, 3, v51
v_lshlrev_b32 v52, 8, v52
v_and_b32 v53, 1, v17
v_lshlrev_b32 v53, 1, v53
v_bfe_u32 v54, v2, 1, 1
v_add_u32 v53, v53, v54
v_lshl_add_u32 v52, v53, 4, v52
v_and_b32 v54, 1, v2
v_lshl_add_u32 v52, v54, 3, v52
v_add_u32 v52, {L_W}, v52
s_lshl_b32 s56, s60, 1
v_xor_b32 v53, s56, v51
v_xor_b32 v54, 1, v53
v_lshl_add_u32 v53, v53, 6, v52
v_lshl_add_u32 v54, v54, 6, v52""")
    a(f"""s_mul_i32 s56, s2, 25600
s_lshl_b32 s57, s59, 13
s_add_u32 s56, s56, s57
s_lshl_b32 s57, s60, 7
s_add_u32 s56, s56, s57
v_lshlrev_b32 v56, 2, v48
v_lshl_add_u32 v56, v49, 10, v56
v_add_u32 v56, s56, v56
v_lshlrev_b32 v21, 4, v2
v_lshlrev_b32 v44, 4, v0
v_mov_b32 v25, 1
s_mov_b32 s58, 42800
s_mov_b32 s62, {LOG2E}
s_mov_b32 s63, {LOG2E}
s_mov_b32 s64, 0x7fff0000
s_movk_i32 s65, 4096
s_mov_b32 s66, 0xffff""")
    if not DM: a("s_mul_i32 s57, s2, 51200\ns_add_u32 s57, s57, s7")
    ts("issued")
    PB=192; SH=200
    def eadma(m):
        a(f"s_add_u32 m0, s7, {L_EA+m*8192}\ns_add_u32 s56, s57, {m*8192}\nbuffer_load_dwordx4 v21, s[52:55], s56 offen lds")
    G=[int(x) for x in opt.get('G','0011')]
    def gat(pos):
        for i in range(4):
            if G[i]==pos: a(f"buffer_load_dwordx2 v[{PB+2*i}:{PB+2*i+1}], v{PB+2*i}, s[40:43], 0 offen")
    def ng(pos): return sum(1 for g in G if g<=pos)
    a("s_waitcnt vmcnt(4)")
    ts("dst")
    for i in range(4):
        d=8+i; b=26+i
        a(f"v_mul_u32_u24 v{b}, s58, v{d}\nv_lshrrev_b32 v{b}, 22, v{b}\nv_lshlrev_b32 v{36+i}, 2, v{b}")
    a("s_mov_b64 exec, s[26:27]")
    for i in range(4): a(f"ds_add_rtn_u32 v{40+i}, v{36+i}, v25 offset:{L_CNT}")
    a("s_mov_b64 exec, -1")
    wdma()
    a("s_waitcnt vmcnt(7)")
    for i in range(4):
        a(f"v_mul_u32_u24 v{PB+2*i}, 6, v{12+i}\nv_and_b32 v{PB+2*i}, -4, v{PB+2*i}")
    assert DM
    NEA=0
    if not DM:
        for m in range(6): eadma(m)
        a(f"s_cmp_ge_u32 s3, 2\ns_cbranch_scc1 {E}_noex"); eadma(6); a.label(f"{E}_noex")
        NEA=6
    def meta(a):
        for i in range(4):
            d=8+i; s=12+i; b=26+i; x=204+2*(i&1); y=x+1
            a(f"""v_mul_u32_u24 v{x}, 98, v{b}
v_sub_u32 v{d}, v{d}, v{x}
v_mul_u32_u24 v{x}, 147, v{d}
v_lshrrev_b32 v{x}, 10, v{x}
v_mul_u32_u24 v{y}, 7, v{x}
v_sub_u32 v{d}, v{d}, v{y}
v_add_u32 v{y}, 5, v{x}
v_lshrrev_b32 v{y}, 4, v{y}
v_add_u32 v{x}, v{x}, v{y}
v_lshl_add_u32 v{x}, v{x}, 3, v{d}
v_and_b32 v{SH+i}, 1, v{s}
v_lshl_or_b32 v{s}, v{x}, 24, v{s}
v_and_b32 v{d}, 3, v{d}
v_lshl_or_b32 v{s}, v{d}, 20, v{s}
v_lshlrev_b32 v{SH+i}, 4, v{SH+i}""")
    M=cap(meta)
    npre=int(opt.get('MP','15'))
    for l in M[:npre]: a(l)
    M=M[npre:]
    a("s_waitcnt lgkmcnt(0)\ns_barrier")
    ts("cnt")
    a(f"ds_read_b128 v[32:35], v21 offset:{L_CNT}")
    gat(0)
    for l in M[:15]: a(l)
    M=M[15:]
    a(f"""s_waitcnt lgkmcnt(0)
v_add_u32 v6, v32, v33
v_add_u32 v7, v6, v34
v_add_u32 v31, v7, v35
v_mov_b32 v30, v31""")
    M=ilv(a, [M.pop(0)]+cap(lambda t: wave_scan(t,31)), M, [0,2,2,2,2,2,0])
    a(f"""v_sub_u32 v60, v31, v30
v_add_u32 v61, v60, v32
v_add_u32 v62, v60, v6
v_add_u32 v63, v60, v7
ds_write_b128 v21, v[60:63] offset:{L_START}""")
    for i in range(4): a(f"ds_read_b32 v{56+i+1 if False else 208+i}, v{36+i} offset:{L_START}")
    for l in M: a(l)
    a(f"v_lshlrev_b32 v45, 7, v0\nv_add_u32 v46, {DBIAS}, v22\ns_waitcnt lgkmcnt(0)\ns_mov_b64 exec, s[26:27]")
    for i in range(4):
        a(f"""v_add_u32 v{40+i}, v{40+i}, v{208+i}
v_mul_u32_u24 v{36+i}, 12, v{40+i}
ds_write_b32 v{36+i}, v{12+i} offset:{L_REC}""")
        if DM:
            a(f"v_sub_u32 v{40+i}, v46, v{40+i}\nv_add_lshl_u32 v{40+i}, v{40+i}, {i}, 16")
        else:
            a(f"v_lshlrev_b32 v30, 1, v{40+i}\nv_add_u32 v31, {32*i}, v45\nds_write_b16 v30, v31 offset:{L_INV}")
    a("s_mov_b64 exec, -1")
    gat(1)
    a(f"s_waitcnt vmcnt({ng(1)}) lgkmcnt(0)\ns_barrier")
    ts("hW")
    a(f"s_cmp_lg_u32 s3, 7\ns_cbranch_scc1 {E}_notab")
    for i in range(4): a(f"v_lshl_or_b32 v{32+i}, v{32+i}, 16, v{60+i}")
    a(f"""v_lshrrev_b32 v30, 1, v2
s_movk_i32 s56, 8000
v_mul_u32_u24 v30, s56, v30
v_and_b32 v31, 1, v2
v_lshl_add_u32 v30, v31, 4, v30
s_lshl_b32 s56, s2, 5
s_add_u32 s56, s56, {OFF_TAB}
buffer_store_dwordx4 v[32:35], v30, s[28:31], s56 offen {ST}""")
    a.label(f"{E}_notab")
    gat(2)
    if not DM:
        a(f"v_lshrrev_b32 v46, 1, v0\nv_lshlrev_b32 v46, 1, v46")
        for i in range(7): a(f"ds_read_u16 v{204+i}, v46 offset:{L_INV+i*512}")
    for k in range(8):
        if k == 0: a(f"ds_read_b128 v[64:67], v50")
        else: a(f"v_xor_b32 v55, {32*k}, v50\nds_read_b128 v[{64+4*k}:{67+4*k}], v55")
        for z in range(2):
            for u in range(2):
                r = 96+8*k+4*z+2*u
                a(f"ds_read_b64_tr_b16 v[{r}:{r+1}], v{53+z} offset:{k*4096+u*1024}")
        if k >= 2:
            kk = k-2
            a("s_waitcnt lgkmcnt(10)")
            for z in range(2):
                D = 160+16*z; C = f"v[{D}:{D+15}]" if kk else "0"
                a(f"v_mfma_f32_32x32x16_bf16 v[{D}:{D+15}], v[{64+4*kk}:{67+4*kk}], v[{96+8*kk+4*z}:{99+8*kk+4*z}], {C}")
    for kk in (6,7):
        a(f"s_waitcnt lgkmcnt({5 if kk==6 else 0})")
        for z in range(2):
            D = 160+16*z
            a(f"v_mfma_f32_32x32x16_bf16 v[{D}:{D+15}], v[{64+4*kk}:{67+4*kk}], v[{96+8*kk+4*z}:{99+8*kk+4*z}], v[{D}:{D+15}]")
    ts("gemm")
    gat(3)
    a(f"""s_add_u32 s56, s2, 1
s_mul_i32 s56, s56, 25600
s_mov_b32 s32, s24
s_mov_b32 s33, s25
s_mov_b32 s34, s56
s_mov_b32 s35, 0x20000""")
    if not DM:
        a(f"v_and_b32 v55, 1, v0\nv_lshlrev_b32 v55, 4, v55\nv_add_u32 v55, {L_EA}, v55")
        for i in range(7): a(f"v_add_u32 v{204+i}, v{204+i}, v55")
    for r in range(0,16,2):
        a(f"v_pk_mul_f32 v[{160+r}:{161+r}], v[{160+r}:{161+r}], s[62:63]\nv_pk_mul_f32 v[{176+r}:{177+r}], v[{176+r}:{177+r}], s[62:63]")
    for r in range(16):
        lo=160+r; hi=176+r
        a(f"""v_cvt_pk_bf16_f32 v{lo}, v{lo}, v{hi}
v_and_b32 v{hi}, 0x7fffffff, v{hi}
v_add_u32 v{hi}, 0x8000, v{hi}
v_sub_u32_sdwa v{hi}, v{hi}, v{lo} clamp dst_sel:DWORD dst_unused:UNUSED_PAD src0_sel:DWORD src1_sel:WORD_0
v_bfi_b32 v{lo}, s64, v{hi}, v{lo}""")
        q = r>>2
        a(f"buffer_store_dword v{lo}, v56, s[32:35], {'s65' if q>>1 else '0'} offen offset:{(r&3)*256+(q&1)*2048} {ST}")
    ts("qst")
    a(f"s_waitcnt vmcnt({16+NEA})\ns_mov_b64 exec, s[26:27]")
    for i in range(4):
        lo=PB+2*i; hi=lo+1
        a(f"v_alignbit_b32 v{lo}, v{hi}, v{lo}, v{SH+i}\nv_lshrrev_b32 v{hi}, v{SH+i}, v{hi}")
        if DM: a(f"v_and_or_b32 v{hi}, v{hi}, s66, v{40+i}")
        else: a(f"v_and_b32 v{hi}, s66, v{hi}")
        a(f"ds_write2_b32 v{36+i}, v{lo}, v{hi} offset0:1 offset1:2")
    a("s_mov_b64 exec, -1")
    a(f"s_mul_i32 s56, s2, 19200\ns_add_u32 s56, s56, {OFF_REC}\nv_cmp_gt_u32 vcc, 176, v0\nv_add_u32 v45, 16384, v44\nv_cndmask_b32 v45, v5, v45, vcc\ns_add_u32 s57, s56, 8192")
    if DM: a("s_waitcnt lgkmcnt(0)\ns_barrier")
    else: a("s_waitcnt vmcnt(16) lgkmcnt(0)\ns_barrier")
    ts("rec")
    for i in range(3): a(f"ds_read_b128 v[{8+4*i}:{11+4*i}], v44 offset:{L_REC+i*8192}")
    if not DM:
        for i in range(6): a(f"ds_read_b128 v[{64+4*i}:{67+4*i}], v{204+i}")
    n=0 if DM else 6
    a(f"s_waitcnt lgkmcnt({n+2})\nbuffer_store_dwordx4 v[8:11], v44, s[28:31], s56 offen {ST}")
    a(f"s_waitcnt lgkmcnt({n+1})\nbuffer_store_dwordx4 v[12:15], v44, s[28:31], s57 offen {ST}")
    a(f"s_waitcnt lgkmcnt({n})\nbuffer_store_dwordx4 v[16:19], v45, s[28:31], s56 offen {ST}")
    if not DM:
        a(f"s_mul_i32 s56, s2, 51200\ns_add_u32 s56, s56, {OFF_EAP}")
        for i in range(6):
            a(f"s_add_u32 s57, s56, {i*8192}\ns_waitcnt lgkmcnt({5-i})\nbuffer_store_dwordx4 v[{64+4*i}:{67+4*i}], v44, s[28:31], s57 offen {ST}")
        a(f"s_cmp_ge_u32 s3, 2\ns_cbranch_scc1 {E}_noe7")
        a(f"ds_read_b128 v[88:91], v210\ns_add_u32 s57, s56, {6*8192}\ns_waitcnt lgkmcnt(0)\nbuffer_store_dwordx4 v[88:91], v44, s[28:31], s57 offen {ST}")
        a.label(f"{E}_noe7")
    ts("east"); ts.dump()
    a("s_endpgm")
    a.label(f"{E}_prep")
    srd(a, 28, 24, WS_USED)
    a(f"""v_and_b32 v48, 31, v2
v_lshrrev_b32 v49, 5, v2
v_lshlrev_b32 v21, 4, v2
s_cmp_eq_u32 s2, 253
s_cbranch_scc1 {E}_small""")
    a("""s_barrier
s_cmp_eq_u32 s2, 250
s_cselect_b32 s32, s18, s22
s_cselect_b32 s33, s19, s23
s_mov_b32 s34, 65536
s_mov_b32 s35, 0x20000
s_cmp_eq_u32 s2, 252
s_cselect_b32 s4, 32768, 0
s_lshl_b32 s5, s3, 12
s_add_u32 s4, s4, s5
s_mov_b32 m0, s5
s_nop 0""")
    for m in range(4): a(f"buffer_load_dwordx4 v21, s[32:35], s4 offen offset:{m*1024} lds")
    a(f"""s_and_b32 s6, s3, 3
s_lshl_b32 s6, s6, 13
s_lshr_b32 s7, s3, 2
s_lshl_b32 s7, s7, 7
s_add_u32 s6, s6, s7
s_cmp_eq_u32 s2, 250
s_cselect_b32 s56, 1, 2
s_cselect_b32 s57, 64, 2
s_cmp_eq_u32 s2, 252
s_cselect_b32 s58, 10, 11
v_lshlrev_b32 v50, s56, v48
v_lshlrev_b32 v51, s58, v49
v_add3_u32 v50, v50, v51, s6
v_add_u32 v51, s57, v50
s_sub_u32 s59, s2, 250
s_lshl_b32 s59, s59, 15
s_add_u32 s59, s59, s5
s_add_u32 s59, s59, {OFF_WF}
s_mov_b32 s60, 0x05040100
s_waitcnt vmcnt(0)
s_barrier
s_cmp_eq_u32 s2, 252
s_cbranch_scc1 {E}_w2""")
    def frags(w2):
        for m in range(4):
            for e in range(8):
                eo = ((e&3)+8*(e>>2)) if w2 else e
                a(f"ds_read_u16 v{64+8*m+e}, v{50+(m&1)} offset:{((m>>1)*16+eo)*256}")
            a("s_waitcnt lgkmcnt(0)")
            for d in range(4): a(f"v_perm_b32 v{64+8*m+d}, v{64+8*m+2*d+1}, v{64+8*m+2*d}, s60")
    frags(False)
    for m in range(4): a(f"buffer_store_dwordx4 v[{64+8*m}:{67+8*m}], v21, s[28:31], s59 offen offset:{m*1024}")
    a("s_endpgm")
    a.label(f"{E}_w2")
    frags(True)
    a(f"""s_and_b32 s4, s3, 1
s_bitcmp1_b32 s3, 1
s_cbranch_scc1 {E}_w2b
s_lshl_b32 s4, s4, 13
s_add_u32 s4, s4, s7
s_add_u32 s4, s4, {OFF_WF+WF_W2}
s_add_u32 s6, s4, 4096
v_lshlrev_b32 v22, 2, v48
v_lshl_add_u32 v22, v49, 10, v22""")
    for m in range(4):
        for d in range(4): a(f"buffer_store_dword v{64+8*m+d}, v22, s[28:31], {'s6' if m>>1 else 's4'} offen offset:{(m&1)*2048+d*256}")
    a("s_endpgm")
    a.label(f"{E}_w2b")
    a(f"s_lshl_b32 s4, s4, 12\ns_lshl_b32 s7, s7, 6\ns_add_u32 s4, s4, s7\ns_add_u32 s4, s4, {OFF_WF+WF_W2+16384}")
    for m in range(4): a(f"buffer_store_dwordx4 v[{64+8*m}:{67+8*m}], v21, s[28:31], s4 offen offset:{m*1024}")
    a("s_endpgm")
    a.label(f"{E}_small")
    srd(a, 32, 18, 17*256, 256*256)
    srd(a, 36, 20, 256)
    a(f"""s_and_b32 s4, s3, 3
s_lshl_b32 s5, s4, 6
v_lshl_add_u32 v50, v48, 1, s5
s_mov_b32 s62, {LOG2E}
s_cmp_ge_u32 s3, 4
s_cbranch_scc1 {E}_wdi
v_lshl_add_u32 v51, v49, 11, v50""")
    for e in range(8): a(f"buffer_load_ushort v{64+e}, v51, s[32:35], 0 offen offset:{256+e*256}")
    a("""v_and_b32 v52, 0x38, v2
v_lshlrev_b32 v52, 2, v52
v_bfe_u32 v53, v2, 1, 1
v_lshl_add_u32 v52, v53, 4, v52
v_bfe_u32 v53, v2, 2, 1
v_lshl_add_u32 v52, v53, 3, v52
v_and_b32 v53, 1, v2
v_lshl_add_u32 v52, v53, 2, v52
buffer_load_dword v72, v52, s[36:39], 0 offen
s_waitcnt vmcnt(0)""")
    for e in range(8): a(f"v_lshlrev_b32 v{64+e}, 16, v{64+e}\nv_mul_f32 v{64+e}, s62, v{64+e}")
    for d in range(4): a(f"v_cvt_pk_bf16_f32 v{64+d}, v{64+2*d}, v{65+2*d}")
    a(f"""s_lshl_b32 s5, s4, 10
s_add_u32 s5, s5, {OFF_WF+WF_WA}
buffer_store_dwordx4 v[64:67], v21, s[28:31], s5 offen
v_lshlrev_b32 v22, 2, v2
s_mov_b32 s5, {OFF_WF+WF_WX}
buffer_store_dword v72, v22, s[28:31], s5 offen
s_endpgm""")
    a.label(f"{E}_wdi")
    a(f"""buffer_load_ushort v64, v50, s[32:35], 0 offen
v_cmp_gt_u32 vcc, 32, v2
v_lshlrev_b32 v22, 2, v2
s_lshl_b32 s5, s4, 8
s_add_u32 s5, s5, {OFF_WF+WF_WDI}
s_waitcnt vmcnt(0)
v_lshlrev_b32 v64, 16, v64
v_mul_f32 v64, s62, v64
v_cvt_pk_bf16_f32 v64, 0, v64
v_cndmask_b32 v64, 0, v64, vcc
buffer_store_dword v64, v22, s[28:31], s5 offen""")
    a.label(f"{E}_end")
    a("s_endpgm")
    gen_k1.names=ts.names
    return a.lines, 212, K1_LDS
```

```python
from asmlib import *
from gen_k1 import *
RMAX=1792; WSMALL=1408; NTILE=61; SMAX=NTILE*32
L_PA=57344; L_RP=57344; L_BLK=61440; L_W1=65536; L_POSD=100480; L_S=102400; L_MI=135168; L_PD=160256; L_WX=162304; L_CNT=162560; L_WT=L_CNT+64; K2_LDS=162816
QB=(16,32); Z0=48; Z1=64; EE=80; M0=96; M1=104; SF=112; TT=120; WA=152; PP=160; F23=168; SEL=176; EA=192; PA=196; YY=200
vIdx=232; vX=233; vCode=(234,235); vR=(236,237); vEAa=238; vSa=239; vSbase=240; vSrd=(241,242); vR2=243; vZero=244; vMI=245; vPD=246; vWX=247
vW2=1; vLane=2; vA=3; vOutA=4; vOutB=5
META=248; RANK=252
def R(b,n): return f"v[{b}:{b+n-1}]"
def mfma(a,D,A,B,C): a(f"v_mfma_f32_32x32x16_bf16 {R(D,16)}, {R(A,4)}, {R(B,4)}, {R(C,16) if C is not None else 0}")
sW=3; sQ=4; sWS=12; sHH=16; sOUT=20; sB=30; sH=31; sTAB=32; sEAP=36; sWin=40; sWsz=41; sFirst=42; sTot=43; sWn=44; sTeam=45
sV=46
sT=54; sNT=55; sEvS=56; sEvF=57; sEv1=58; sEv2=59; sSwap=60; sLo=62; sMIm=64; sHi16=66; sL2E=68; sRow0=70; sW2=71; sT2=72; sOne=74
t0=76; t1=77; t2=78; t3=79; tp=80

def gen_k2(name, opt):
    a = Asm(); ts=TS(a, opt.get("TS"), [88,90,92,94,96,98,100,10,26,46,48,50,52], 1, 28, sW, vLane, sTAB, 6); E="L_k2"; SAFE=opt.get('SAFE'); ST=opt.get('ST2','')
    a(f"s_cmp_ge_u32 s2, 256\ns_cbranch_scc1 {E}_end")
    ts("start")
    a("s_load_dwordx2 s[8:9], s[0:1], 0\ns_load_dwordx4 s[24:27], s[0:1], 64\ns_load_dwordx2 s[28:29], s[0:1], 80")
    a(f"""v_lshrrev_b32 v1, 6, v0
v_and_b32 v{vLane}, 63, v0
v_readfirstlane_b32 s{sW}, v1
s_and_b32 s{sB}, s2, 7
s_lshl_b32 s{sB}, s{sB}, 5
s_lshr_b32 s{t0}, s2, 3
s_add_u32 s{sB}, s{sB}, s{t0}
s_and_b32 s{sH}, s{sW}, 1
s_lshr_b32 s{sTeam}, s{sW}, 1
s_mul_i32 s{sRow0}, s{sTeam}, 28
s_min_u32 s{sRow0}, s{sRow0}, 77
s_mov_b32 s{sWin}, 0
s_movk_i32 s{sWsz}, {RMAX}
s_mov_b32 s{sFirst}, 1
s_mov_b32 s{sLo}, -1
s_mov_b32 s{sLo+1}, 0
s_mov_b32 s{sMIm}, 0x01111111
s_mov_b32 s{sMIm+1}, 0x01111111
s_mov_b32 s{sHi16}, 0xffff0000
s_mov_b32 s{sL2E}, {LOG2E}
s_mov_b32 s{sL2E+1}, {LOG2E}
s_mov_b32 s{sOne}, 1.0
s_mov_b32 s{sOne+1}, 1.0
s_waitcnt lgkmcnt(0)""")
    srd(a, sTAB, 28, 256000, OFF_TAB)
    srd(a, sWS, 28, WS_USED)
    srd(a, sHH, 8, 6400000)
    srd(a, sEAP, 28, 12800000, OFF_EAP)
    srd(a, sOUT, 24, 6400000)
    a(f"""s_lshl_b32 s{t0}, s{sH}, 7
s_add_u32 s{sQ}, s28, s{t0}
s_addc_u32 s{sQ+1}, s29, 0
s_and_b32 s{sQ+1}, s{sQ+1}, 0xffff
s_or_b32 s{sQ+1}, s{sQ+1}, 0x80000000
s_mov_b32 s{sQ+2}, 6400000
s_mov_b32 s{sQ+3}, 0xC00000""")
    a(f"v_lshlrev_b32 v6, 2, v0\nv_add_u32 v7, {L_PD}, v6\nv_mov_b32 v8, 0\nds_write_b32 v7, v8")
    a.label(f"{E}_round")
    a(f"""v_lshrrev_b32 v6, 1, v0
s_lshl_b32 s{t0}, s{sB}, 2
v_lshl_add_u32 v7, v6, 10, s{t0}
buffer_load_dword v9, v7, s[{sTAB}:{sTAB+3}], 0 offen
v_lshrrev_b32 v7, 3, v0
v_add_u32 v8, 4, v7
v_lshrrev_b32 v8, 4, v8
v_sub_u32 v7, v7, v8
v_mul_u32_u24 v7, 7, v7
v_and_b32 v8, 7, v0
s_mul_i32 s{t1}, s{sB}, 98
v_add3_u32 v7, v7, v8, s{t1}
v_lshlrev_b32 v7, 4, v7
v_mov_b32 v15, {BIG}
v_cmp_gt_u32 vcc, 120, v0
s_mov_b32 s{t2}, {OFF_POS}
v_lshlrev_b32 v14, 4, v{vLane}
v_cndmask_b32 v7, v15, v7, vcc
buffer_load_dwordx4 {R(EA,4)}, v7, s[{sWS}:{sWS+3}], s{t2} offen
s_lshl_b32 s{t2}, s{sH}, 11
s_add_u32 s{t2}, s{t2}, {OFF_WF+WF_WA}
buffer_load_dwordx4 {R(WA,4)}, v14, s[{sWS}:{sWS+3}], s{t2} offen
buffer_load_dwordx4 {R(WA+4,4)}, v14, s[{sWS}:{sWS+3}], s{t2} offen offset:1024
v_lshlrev_b32 v{vW2}, 2, v{vLane}
s_lshl_b32 s{t2}, s{sH}, 9
s_add_u32 s{t2}, s{t2}, {OFF_WF+WF_WDI}
buffer_load_dword v{RANK}, v{vW2}, s[{sWS}:{sWS+3}], s{t2} offen
buffer_load_dword v{RANK+1}, v{vW2}, s[{sWS}:{sWS+3}], s{t2} offen offset:256""")
    def hsrc(dst, rowexpr):
        a(f"""{rowexpr}
v_mul_u32_u24 v11, 147, v10
v_lshrrev_b32 v11, 10, v11
v_mul_u32_u24 v12, 7, v11
v_sub_u32 v12, v10, v12
v_add_u32 v13, 5, v11
v_lshrrev_b32 v13, 4, v13
v_add_u32 v11, v11, v13
v_and_b32 v11, 1, v11
v_and_b32 v13, 3, v12
v_lshl_add_u32 v13, v11, 2, v13
v_lshrrev_b32 v12, 2, v12
v_lshl_add_u32 v13, v12, 3, v13
v_xor_b32 v13, v13, v8
v_lshlrev_b32 v13, 4, v13
v_lshl_add_u32 v{dst}, v10, 8, v13""")
    a(f"v_lshrrev_b32 v7, 4, v{vLane}\nv_and_b32 v8, 15, v{vLane}\ns_mul_i32 s{t1}, s{sB}, {98*256}\ns_lshl_b32 s{t2}, s{sW}, 2\ns_lshl_b32 s{t3}, s{sW}, 10")
    for m in range(3):
        hsrc(16+m, f"s_add_u32 s{t0}, s{t2}, {32*m}\nv_add_u32 v10, s{t0}, v7")
        a(f"s_add_u32 m0, s{t3}, {L_MI+m*8192}\ns_nop 0\nbuffer_load_dwordx4 v{16+m}, s[{sHH}:{sHH+3}], s{t1} offen lds")
    a(f"s_lshl_b32 s{t3}, s{sW}, 12\ns_add_u32 m0, s{t3}, {L_S}\ns_add_u32 s{t0}, s{t3}, {OFF_WF+WF_WD}")
    for m in range(4): a(f"buffer_load_dwordx4 v14, s[{sWS}:{sWS+3}], s{t0} offen offset:{m*1024} lds")
    a(f"s_add_u32 m0, s{t3}, {L_W1}\ns_add_u32 s{t0}, s{t3}, {OFF_WF+WF_W1}")
    for m in range(4): a(f"buffer_load_dwordx4 v14, s[{sWS}:{sWS+3}], s{t0} offen offset:{m*1024} lds")
    a(f"s_cmp_lg_u32 s{sW}, 7\ns_cbranch_scc1 {E}_noex")
    hsrc(19, "v_add_u32 v10, 96, v7")
    a(f"""s_mov_b32 m0, {L_MI+24*1024}
s_mov_b64 exec, s[{sLo}:{sLo+1}]
buffer_load_dwordx4 v19, s[{sHH}:{sHH+3}], s{t1} offen lds
s_mov_b64 exec, -1
s_mov_b32 m0, {L_WX}
s_mov_b32 s{t0}, {OFF_WF+WF_WX}
buffer_load_dword v{vW2}, s[{sWS}:{sWS+3}], s{t0} offen lds""")
    a.label(f"{E}_noex")
    a(f"""v_and_b32 v7, 60, v{vW2}
v_add_u32 v7, {L_CNT}, v7
v_mov_b32 v8, 0
ds_write_b32 v7, v8
v_and_b32 v12, 1, v0
v_cmp_eq_u32 vcc, 0, v12
s_lshl_b32 s{t0}, s{sW}, 2
s_add_u32 s{t0}, s{t0}, {L_WT}
v_mov_b32 v13, s{t0}
s_waitcnt vmcnt(16)
v_lshrrev_b32 v10, 16, v9
v_and_b32 v9, 0xffff, v9
v_cndmask_b32 v11, 0, v10, vcc
v_mul_u32_u24 v6, 1600, v6
v_add3_u32 v9, v9, v6, v12""")
    ts("tab")
    wave_scan(a, 11)
    a(f"""s_mov_b32 exec_lo, 0
s_mov_b32 exec_hi, 0x80000000
ds_write_b32 v13, v11
s_mov_b64 exec, -1
v_sub_u32 v11, v11, v10
v_and_b32 v7, 28, v{vW2}
v_add_u32 v7, {L_WT}, v7
s_waitcnt lgkmcnt(0)
s_barrier
ds_read_b32 v8, v7
s_waitcnt lgkmcnt(0)
v_mov_b32 v13, v8""")
    for sh in (1,2,4): a(f"v_add_u32_dpp v8, v8, v8 row_shr:{sh} row_mask:0xf bank_mask:0xf bound_ctrl:1")
    a(f"""v_sub_u32 v13, v8, v13
v_readlane_b32 s{sTot}, v8, 7
v_readlane_b32 s{t0}, v13, s{sW}
s_cmp_gt_u32 s{sTot}, {RMAX}
s_cselect_b32 s{sWsz}, {WSMALL}, s{sWsz}
s_sub_u32 s{sWn}, s{sTot}, s{sWin}
s_min_u32 s{sWn}, s{sWn}, s{sWsz}
s_sub_u32 s{t0}, s{t0}, s{sWin}
s_lshl_b32 s{t1}, s{sWn}, 2
v_add3_u32 v11, v11, v12, s{t0}
v_lshlrev_b32 v11, 2, v11""")
    a.label(f"{E}_exp")
    a(f"""v_cmpx_lt_u32 vcc, v12, v10
s_cbranch_execz {E}_expd
v_min_u32 v7, s{t1}, v11
ds_write_b32 v7, v9 offset:{L_RP}
v_add_u32 v12, 2, v12
v_add_u32 v11, 8, v11
v_add_u32 v9, 2, v9
s_branch {E}_exp""")
    a.label(f"{E}_expd")
    a(f"""s_mov_b64 exec, -1
v_lshlrev_b32 v6, 2, v0
v_lshrrev_b32 v7, 1, v{vLane}
s_lshl_b32 s{t0}, s{sW}, 5
v_add_u32 v7, s{t0}, v7
v_lshlrev_b32 v8, 2, v7
v_lshrrev_b32 v9, 4, v{vLane}
v_xor_b32 v9, v9, v{vLane}
v_and_b32 v9, 1, v9
v_lshlrev_b32 v9, 4, v9
s_waitcnt lgkmcnt(0)
s_barrier""")
    ts("exp")
    for i in range(4): a(f"ds_read_b32 v{META+i}, v6 offset:{L_RP+i*2048}")
    for i in range(7): a(f"ds_read_b32 v{16+i}, v8 offset:{L_RP+i*1024}")
    for i in range(4):
        a(f"s_sub_u32 s{t0}, s{sWn}, {512*i}\ns_cselect_b32 s{t0}, 0, s{t0}\nv_cmp_gt_u32 s[{sV+2*i}:{sV+2*i+1}], s{t0}, v0")
    a(f"s_mov_b32 s{t1}, {OFF_META}\ns_waitcnt lgkmcnt(7)")
    for i in range(4):
        a(f"v_lshlrev_b32 v{META+i}, 2, v{META+i}\nv_cndmask_b32 v{META+i}, v15, v{META+i}, s[{sV+2*i}:{sV+2*i+1}]")
        a(f"buffer_load_dword v{META+i}, v{META+i}, s[{sWS}:{sWS+3}], s{t1} offen")
    a(f"s_lshl_b32 s{t1}, s{sW}, 10\ns_waitcnt lgkmcnt(0)")
    for i in range(7):
        a(f"""s_sub_u32 s{t0}, s{sWn}, {256*i}
s_cselect_b32 s{t0}, 0, s{t0}
v_cmp_gt_u32 vcc, s{t0}, v7
v_lshl_add_u32 v{16+i}, v{16+i}, 5, v9
s_add_u32 m0, s{t1}, {i*8192}
v_cndmask_b32 v{16+i}, v15, v{16+i}, vcc
buffer_load_dwordx4 v{16+i}, s[{sEAP}:{sEAP+3}], 0 offen lds""")
    a(f"""v_and_b32 v7, 31, v{vLane}
v_lshrrev_b32 v8, 5, v{vLane}
v_lshrrev_b32 v9, 4, v7
v_bfe_u32 v10, v7, 2, 1
v_lshl_add_u32 v9, v9, 1, v10
v_mul_u32_u24 v9, 7, v9
v_and_b32 v10, 3, v7
v_bfe_u32 v11, v7, 3, 1
v_lshl_add_u32 v10, v11, 2, v10
v_add3_u32 v9, v9, v10, s{sRow0}
v_min_u32 v9, 97, v9
v_and_b32 v10, 15, v7
v_xor_b32 v10, v10, v8
v_lshlrev_b32 v10, 4, v10
v_lshl_add_u32 v9, v9, 8, v10
v_add_u32 v{vA}, {L_MI}, v9
s_lshl_b32 s{t0}, s{sH}, 14
s_add_u32 s{t1}, s{t0}, {L_S}
v_add_u32 v12, s{t1}, v14
s_add_u32 s{t1}, s{t0}, {L_W1}
v_add_u32 v13, s{t1}, v14
v_lshlrev_b32 v10, 4, v0
v_add_u32 v10, {L_POSD}, v10
v_cmp_gt_u32 vcc, 120, v0
s_waitcnt vmcnt(11)
s_mov_b64 exec, vcc
ds_write_b128 v10, {R(EA,4)}
s_mov_b64 exec, -1
s_barrier""")
    ts("meta")
    D0=SEL; D1=232
    def aread(k):
        if k == 0: a(f"ds_read_b128 {R(TT,4)}, v{vA}")
        else: a(f"v_xor_b32 v9, {32*k}, v{vA}\nds_read_b128 {R(TT+4*k,4)}, v9")
    for k in range(4):
        aread(k)
        for z in range(2): a(f"ds_read_b128 {R(16+8*k+4*z,4)}, v12 offset:{(2*k+z)*1024}")
    for k in range(4):
        a(f"s_waitcnt lgkmcnt({9 if k<4 else 0})")
        for z in range(2): mfma(a, (D0,D1)[z], TT+4*k, 16+8*k+4*z, (D0,D1)[z] if k else None)
        aread(k+4)
        for z in range(2): a(f"ds_read_b128 {R(16+8*k+4*z,4)}, v12 offset:{(2*k+8+z)*1024}")
    for k in range(4):
        a(f"s_waitcnt lgkmcnt(9)")
        for z in range(2): mfma(a, (D0,D1)[z], TT+16+4*k, 16+8*k+4*z, (D0,D1)[z])
        for f in range(3): a(f"ds_read_b128 {R(Z0+4*(3*k+f),4)}, v13 offset:{(3*k+f)*1024}")
    for f in range(12,16): a(f"ds_read_b128 {R(Z0+4*f,4)}, v13 offset:{f*1024}")
    POSR=(SF,SF+4,EA,PA)
    a(f"s_mov_b32 s{t1}, {OFF_POS}\ns_movk_i32 s{t0}, 0x7fff\nv_mov_b32 v14, 1\ns_waitcnt vmcnt(7)")
    for i in range(4):
        a(f"""v_and_b32 v{10+i}, s{t0}, v{META+i}
v_lshlrev_b32 v{10+i}, 4, v{10+i}
buffer_load_dwordx4 {R(POSR[i],4)}, v{10+i}, s[{sWS}:{sWS+3}], s{t1} offen""")
    for i in range(4):
        a(f"v_lshrrev_b32 v{6+i}, 23, v{META+i}\nv_lshlrev_b32 v{6+i}, 2, v{6+i}\nv_add_u32 v{6+i}, {L_CNT}, v{6+i}")
    for z in range(2):
        D=(D0,D1)[z]
        for r in range(0,16,2): a(f"v_pk_mul_f32 {R(D+r,2)}, {R(D+r,2)}, s[{sL2E}:{sL2E+1}]")
        for hh in range(2):
            o=(PP,F23)[hh]+4*z
            for d in range(4): a(f"v_cvt_pk_bf16_f32 v{o+d}, v{D+8*hh+2*d}, v{D+8*hh+2*d+1}")
            a(f"v_bfi_b32 v{o+3}, s{sHi16}, v{RANK+z}, v{o+3}")
    for i in range(4):
        a(f"s_mov_b64 exec, s[{sV+2*i}:{sV+2*i+1}]\nds_add_rtn_u32 v{RANK+i}, v{6+i}, v14")
    a(f"""s_mov_b64 exec, -1
v_and_b32 v16, 60, v{vW2}
v_add_u32 v16, {L_CNT}, v16
v_and_b32 v17, 3, v{vLane}
v_cmp_eq_u32 vcc, 3, v17
s_lshl_b32 s{t0}, s{sTeam}, 2
s_waitcnt lgkmcnt(0)
s_barrier""")
    ts("cnt")
    a(f"""ds_read_b32 v18, v16
s_waitcnt lgkmcnt(0)
v_max_u32 v19, 32, v18
v_cndmask_b32 v19, v19, v18, vcc
v_add_u32_dpp v20, v19, v19 quad_perm:[1,0,3,2] row_mask:0xf bank_mask:0xf
v_add_u32_dpp v20, v20, v20 quad_perm:[2,3,0,1] row_mask:0xf bank_mask:0xf
v_sub_u32 v20, 0, v20
v_and_b32 v20, 31, v20
v_cndmask_b32 v20, 0, v20, vcc
v_add_u32 v19, v19, v20
v_mov_b32 v20, v19""")
    for sh in (1,2,4,8): a(f"v_add_u32_dpp v20, v20, v20 row_shr:{sh} row_mask:0xf bank_mask:0xf bound_ctrl:1")
    a(f"""v_sub_u32 v21, v20, v19
v_readlane_b32 s{t3}, v20, 15
v_add_u32 v22, v21, v18
v_sub_u32 v23, v19, v18
s_cmp_gt_u32 s{t3}, {SMAX}
s_cbranch_scc1 {E}_retry""")
    for i in range(4): a(f"ds_bpermute_b32 v{24+i}, v{6+i}, v21")
    a(f"""v_lshrrev_b32 v28, 5, v{vLane}
s_lshl_b32 s{t1}, s{sW}, 1
v_add_u32 v29, s{t1}, v28
v_lshlrev_b32 v29, 2, v29
ds_bpermute_b32 v30, v29, v22
ds_bpermute_b32 v31, v29, v23
v_readlane_b32 s{t2}, v21, s{t0}
v_readlane_b32 s{sEvS}, v20, s{t0}
s_add_u32 s{t0}, s{t0}, 1
v_readlane_b32 s{sEv1}, v20, s{t0}
s_add_u32 s{t0}, s{t0}, 1
v_readlane_b32 s{sEv2}, v20, s{t0}
s_add_u32 s{t0}, s{t0}, 1
v_readlane_b32 s{sNT}, v20, s{t0}
s_sub_u32 s{sNT}, s{sNT}, s{t2}
s_lshr_b32 s{sNT}, s{sNT}, 5
s_add_u32 s{t1}, s{t2}, 1
s_sub_u32 s{sEvS}, s{sEvS}, s{t1}
s_lshr_b32 s{sEvS}, s{sEvS}, 5
s_sub_u32 s{sEv1}, s{sEv1}, s{t1}
s_lshr_b32 s{sEv1}, s{sEv1}, 5
s_sub_u32 s{sEv2}, s{sEv2}, s{t1}
s_lshr_b32 s{sEv2}, s{sEv2}, 5
s_cmp_ge_u32 s{sTeam}, 2
s_cselect_b32 s{sEv2}, 0x10000, s{sEv2}
s_mov_b32 s{sEvF}, 0x10000
s_mul_i32 s{t2}, s{t2}, 20
s_add_u32 s{t2}, s{t2}, {L_BLK}
v_lshl_add_u32 v{vIdx}, v28, 4, s{t2}
v_add_u32 v{vX}, s{t2}, v{vW2}
v_lshlrev_b32 v32, 5, v0
v_and_b32 v33, 8, v0
v_lshl_add_u32 v32, v33, 1, v32
s_mov_b32 s{t1}, 0x0FF00000
s_mov_b32 s{t3}, {L_BLK}
s_waitcnt lgkmcnt(2)""")
    for i in range(4):
        a(f"""v_add_u32 v{24+i}, v{24+i}, v{RANK+i}
v_lshrrev_b32 v33, 5, v{24+i}
v_lshl_add_u32 v{24+i}, v{24+i}, 2, s{t3}
v_lshl_add_u32 v{RANK+i}, v33, 9, v{24+i}
v_lshrrev_b32 v{10+i}, 1, v{10+i}
v_lshlrev_b32 v34, 4, v{META+i}
v_and_or_b32 v34, v34, s{t1}, v32
v_xor_b32 v35, 0x00800010, v34
s_mov_b64 exec, s[{sV+2*i}:{sV+2*i+1}]
ds_write_b32 v{RANK+i}, v{10+i}
ds_write2_b32 v{RANK+i}, v34, v35 offset0:32 offset1:64
s_mov_b64 exec, -1""")
        if i < 3: a("v_add_u32 v32, 0x4000, v32")
    X0p=(L_PA+64)|((7*256+48)<<16)
    a(f"""v_and_b32 v33, 31, v{vLane}
v_mov_b32 v36, 0
v_mov_b32 v37, 0
v_mov_b32 v38, 0
v_mov_b32 v39, 0
v_mov_b32 v34, {X0p}
v_mov_b32 v35, {X0p ^ 0x00800010}
s_waitcnt lgkmcnt(8)
v_add_u32 v30, v30, v33
v_cmp_gt_u32 vcc, v31, v33
v_lshrrev_b32 v31, 5, v30
v_lshl_add_u32 v30, v30, 2, s{t3}
v_lshl_add_u32 v30, v31, 9, v30
s_mov_b64 exec, vcc
ds_write_b32 v30, v36
ds_write2_b32 v30, v34, v35 offset0:32 offset1:64
ds_write2_b32 v30, v36, v36 offset0:96 offset1:128
s_mov_b64 exec, -1
s_lshl_b32 s{t0}, s{sW}, 12
s_add_u32 s{t0}, s{t0}, {L_S}
v_lshl_add_u32 v31, v{vLane}, 4, s{t0}""")
    for m in range(4): a(f"ds_write_b128 v31, v[36:39] offset:{m*1024}")
    a(f"""s_cmp_lg_u32 s{sW}, 6
s_cbranch_scc1 {E}_nopa
v_bfe_u32 v40, v{vLane}, 4, 1
v_bfe_u32 v41, v{vLane}, 1, 3
v_and_b32 v42, 1, v{vLane}
v_lshlrev_b32 v43, 11, v40
v_lshl_add_u32 v43, v41, 8, v43
v_lshl_add_u32 v43, v42, 7, v43
v_and_b32 v44, 3, v41
v_lshl_add_u32 v43, v44, 4, v43
v_lshlrev_b32 v44, 4, v42
v_add_u32 v44, 64, v44
v_cmp_gt_u32 vcc, 32, v{vLane}
v_xor_b32 v40, v40, v42
v_lshl_add_u32 v40, v40, 4, v41
v_cndmask_b32 v43, v44, v43, vcc
v_cndmask_b32 v40, 64, v40, vcc
v_mov_b32 v45, 0x3f80""")
    for d in range(4):
        a(f"v_cmp_eq_u32 vcc, {2*d}, v40\nv_cndmask_b32 v{36+d}, 0, v45, vcc")
        if d < 3: a(f"v_cmp_eq_u32 vcc, {2*d+1}, v40\nv_cndmask_b32 v{36+d}, v{36+d}, 1.0, vcc")
    a(f"ds_write_b128 v43, v[36:39] offset:{L_PA}")
    a.label(f"{E}_nopa")
    a("s_waitcnt lgkmcnt(0)\ns_barrier")
    ts("blk")
    def qissue(u):
        for r in range(16):
            if SAFE: a(f"v_and_b32 v{QB[u]+r}, 0x3fff8, v{QB[u]+r}")
            a(f"buffer_load_dword v{QB[u]+r}, v{QB[u]+r}, s[{sQ}:{sQ+3}], 0 offen")
    for u in range(2):
        for q in range(4): a(f"ds_read_b128 {R(QB[u]+4*q,4)}, v{vIdx} offset:{u*640+q*32}")
    for i in range(4):
        a(f"v_lshrrev_b32 v{6+i}, 20, v{META+i}\nv_lshlrev_b32 v{6+i}, 4, v{6+i}\nv_add_u32 v{6+i}, {L_POSD}, v{6+i}\nds_read_b128 {R(SEL+4*i,4)}, v{6+i}")
    a("s_waitcnt lgkmcnt(8)"); qissue(0)
    a("s_waitcnt lgkmcnt(4)"); qissue(1)
    a(f"s_cmp_eq_u32 s{sFirst}, 0\ns_cbranch_scc1 {E}_noh1")
    for k in range(8):
        for z in range(2): mfma(a, YY+16*z, TT+4*k, Z0+8*k+4*z, YY+16*z if k else None)
    a.label(f"{E}_noh1")
    a(f"""v_and_b32 v7, 31, v{vLane}
v_lshrrev_b32 v8, 5, v{vLane}
s_lshl_b32 s{t0}, s{sW}, 12
s_add_u32 s{t0}, s{t0}, {L_S}
v_lshrrev_b32 v9, 4, v7
v_bfe_u32 v10, v7, 2, 1
v_lshl_add_u32 v9, v9, 1, v10
v_lshlrev_b32 v9, 4, v9
v_and_b32 v10, 3, v7
v_bfe_u32 v11, v7, 3, 1
v_lshl_add_u32 v10, v11, 2, v10
v_lshl_add_u32 v9, v10, 1, v9
v_add_u32 v{vSbase}, s{t0}, v9
v_bfe_u32 v9, v7, 2, 2
v_xor_b32 v9, v9, v8
v_lshlrev_b32 v9, 4, v9
v_lshl_add_u32 v9, v7, 6, v9
v_add_u32 v{vSrd[0]}, s{t0}, v9
v_xor_b32 v{vSrd[1]}, 32, v{vSrd[0]}
v_mov_b32 v{vSa}, v{vSbase}
v_mov_b32 v{vZero}, 0
v_lshrrev_b32 v9, 2, v7
v_and_b32 v10, 3, v9
v_lshrrev_b32 v11, 2, v9
v_lshl_add_u32 v10, v11, 3, v10
s_lshl_b32 s{t0}, s{sH}, 3
v_xor_b32 v10, s{t0}, v10
v_xor_b32 v10, v10, v8
v_lshlrev_b32 v10, 4, v10
v_add_u32 v9, s{sRow0}, v9
v_lshl_add_u32 v9, v9, 8, v10
v_add_u32 v{vMI}, {L_MI}, v9
s_lshl_b32 s{t0}, s{sTeam}, 9
s_add_u32 s{t0}, s{t0}, {L_PD}
v_lshl_add_u32 v{vPD}, v7, 2, s{t0}
s_lshl_b32 s{t0}, s{sH}, 7
s_add_u32 s{t0}, s{t0}, {L_WX}
v_lshl_add_u32 v{vWX}, v8, 4, s{t0}
s_mul_i32 s{t0}, s{sB}, 98
s_add_u32 s{t0}, s{t0}, s{sRow0}
s_lshl_b32 s{t0}, s{t0}, 8
s_lshl_b32 s{t1}, s{sH}, 7
s_add_u32 s{t0}, s{t0}, s{t1}
v_mul_u32_u24 v9, 1792, v8
v_lshl_add_u32 v9, v7, 2, v9
v_add_u32 v{vOutA}, s{t0}, v9
s_cmp_ge_u32 s{sTeam}, 2
s_cselect_b32 s{t1}, {BIG}, 0
v_mul_lo_u32 v9, v8, s{t1}
v_add_u32 v{vOutB}, 3584, v{vOutA}
v_add_u32 v{vOutB}, v{vOutB}, v9
s_lshl_b32 s{sW2}, s{sH}, 14
s_add_u32 s{sW2}, s{sW2}, {OFF_WF+WF_W2}
s_mov_b64 s[{sSwap}:{sSwap+1}], s[{sLo}:{sLo+1}]
s_mov_b32 s{sT}, 0
s_sub_u32 s{sT2}, s{sNT}, 2
v_lshlrev_b32 v9, 2, v8
v_sub_u32 v15, v7, v9""")
    a("s_waitcnt vmcnt(32) lgkmcnt(0)")
    for i in range(4):
        p=POSR[i]; d=SEL+4*i
        a(f"v_pk_add_f32 {R(d,2)}, {R(d,2)}, {R(p,2)} neg_lo:[0,1] neg_hi:[0,1]\nv_sub_f32 v{d+2}, v{d+2}, v{p+2}")
    for i in range(4):
        d=SEL+4*i
        a(f"v_cvt_pk_bf16_f32 v{d+1}, v{d+2}, v{d+1}\nv_cvt_pk_bf16_f32 v{d+2}, v{d}, 0")
    for i in range(4):
        d=SEL+4*i; a(f"v_dot2_f32_bf16 v{d+3}, v{d+1}, v{d+1}, 0")
    for i in range(4):
        d=SEL+4*i; a(f"v_dot2_f32_bf16 v{d+3}, v{d+2}, v{d+2}, v{d+3}")
    for i in range(4):
        d=SEL+4*i
        a(f"v_cvt_pk_bf16_f32 v{d}, v{d}, v{d+3}")
    for i in range(4):
        d=SEL+4*i
        a(f"s_mov_b64 exec, s[{sV+2*i}:{sV+2*i+1}]\nds_write2_b32 v{RANK+i}, v{d}, v{d+1} offset0:96 offset1:128")
    a("s_mov_b64 exec, -1")
    for r in range(8): a(f"v_mov_b32 v{SF+r}, 0")
    a(f"s_cmp_eq_u32 s{sFirst}, 0\ns_cbranch_scc1 {E}_noh2")
    for r in range(0,32,2): a(f"v_pk_mul_f32 {R(YY+r,2)}, {R(YY+r,2)}, s[{sL2E}:{sL2E+1}]")
    a.label(f"{E}_noh2")
    mfma(a, TT, SF, SF, None); mfma(a, TT+16, SF, SF, None)
    a("v_mov_b32 v14, 0x3f80")
    for g in range(4):
        for j in range(4):
            a(f"v_cmp_eq_u32 s[{tp+2*j}:{tp+2*j+1}], {8*g+j}, v15")
        for j in range(4):
            a(f"v_cndmask_b32 v{SEL+4*g+j}, 0, v14, s[{tp+2*j}:{tp+2*j+1}]")
    a("s_waitcnt lgkmcnt(0)\ns_barrier")
    ts("pre")
    def xread(u, off):
        a(f"ds_read_u16 v{vEAa}, v{vX} offset:{off+128}\nds_read_u16 v{vCode[u]}, v{vX} offset:{off+130}\nds_read_b32 v{vR[u]}, v{vX} offset:{off+384}")
    def eapa(u):
        a(f"ds_read_b128 {R(EA,4)}, v{vEAa}\nds_read_b128 {R(PA,4)}, v{vCode[u]} offset:{L_PA}")
    def patch(u): a(f"v_bfi_b32 v{PA+3}, s{sHi16}, v{vR[u]}, v{PA+3}")
    xread(0,0); a("s_waitcnt lgkmcnt(0)"); eapa(0); a("s_waitcnt lgkmcnt(0)"); patch(0)
    mfma(a, Z0, EA, WA, None); mfma(a, Z0, PA, PP, Z0)
    a("s_waitcnt vmcnt(16)")
    for g in range(4): mfma(a, Z0, SEL+4*g, QB[0]+4*g, Z0)
    def seg(i, c0=False):
        T=TT+16*(i>>1); M=(M0,M1)[i>>1]+4*(i&1)
        mfma(a, T, M, SF+4*(i&1), None if (c0 and not (i&1)) else T)
    def flush(second, withcvt):
        if second:
            a(f"v_xor_b32 v{vSrd[0]}, 0x800, v{vSrd[0]}\nv_xor_b32 v{vSrd[1]}, 0x800, v{vSrd[1]}")
            a(f"ds_read_b128 {R(SF,4)}, v{vSrd[0]}\nds_read_b128 {R(SF+4,4)}, v{vSrd[1]}")
        for d in range(16): a(f"v_cvt_pk_bf16_f32 v{TT+d}, v{TT+2*d}, v{TT+2*d+1}")
        for q in range(4): a(f"ds_read_b128 {R(TT+16+4*q,4)}, v{vWX} offset:{q*32}")
        for q in range(1,4): a(f"v_xor_b32 v{Z0+q}, {32*q}, v{vMI}")
        a(f"s_mov_b64 exec, s[{sMIm}:{sMIm+1}]")
        for q in range(4): a(f"ds_write_b128 v{Z0+q if q else vMI}, {R(TT+4*q,4)}")
        a(f"s_mov_b64 exec, -1\nv_add_u32 v{vMI}, 1792, v{vMI}\nv_xor_b32 v{vMI}, 64, v{vMI}\ns_waitcnt lgkmcnt(0)")
        for q in range(4): mfma(a, Z0, TT+16+4*q, TT+4*q, Z0 if q else None)
        if second:
            for i in range(4): seg(i, True)
        a(f"s_mov_b32 s{sEvF}, 0x10000")
        if withcvt:
            for d in range(8): a(f"v_cvt_pk_bf16_f32 v{M0+d}, v{EE+2*d}, v{EE+2*d+1}")
        a(f"s_mov_b64 exec, s[{sLo}:{sLo+1}]\nds_add_f32 v{vPD}, v{Z0}\ns_mov_b64 exec, -1\nv_add_u32 v{vPD}, 128, v{vPD}")
    def trans(op, Zs, lo, hi):
        if opt.get('NOTR'): return
        for r in range(lo, hi):
            if op == 'exp': a(f"v_exp_f32 v{EE+r}, -v{Zs+r}")
            else: a(f"v_rcp_f32 v{EE+r}, v{EE+r}")
    def pkadd():
        for r in range(0,16,2): a(f"v_pk_add_f32 {R(EE+r,2)}, {R(EE+r,2)}, s[{sOne}:{sOne+1}]")
    def pkmul(Zs):
        for r in range(0,16,2): a(f"v_pk_mul_f32 {R(EE+r,2)}, {R(EE+r,2)}, {R(Zs+r,2)}")
    outl=[]
    def body(u):
        L=f"{E}_b{u}"; nu=u^1; o=u*640
        xread(nu, o+640)
        mfma(a, Z1, EA, WA+4, QB[u]); trans('exp', Z0, 0, 5)
        mfma(a, Z1, PA, PP+4, Z1); trans('exp', Z0, 5, 7)
        a(f"s_cmp_ge_u32 s{sT}, s{sT2}\ns_waitcnt lgkmcnt(0)"); eapa(nu)
        a(f"s_cbranch_scc1 {L}_noidx")
        for q in range(4): a(f"ds_read_b128 {R(QB[u]+4*q,4)}, v{vIdx} offset:{o+1280+q*32}")
        a.label(f"{L}_noidx")
        trans('exp', Z0, 7, 10)
        seg(0); trans('exp', Z0, 10, 16)
        pkadd()
        seg(1); trans('rcp', Z0, 0, 2)
        a(f"s_waitcnt lgkmcnt(0)\ns_cbranch_scc1 {L}_w2")
        rr=2
        for r in range(16):
            if SAFE: a(f"v_and_b32 v{QB[u]+r}, 0x3fff8, v{QB[u]+r}")
            if opt.get('Q0'): a(f"buffer_load_dword v{QB[u]+r}, v{vZero}, s[{sQ}:{sQ+3}], 0 offen")
            elif not opt.get('NOQ'): a(f"buffer_load_dword v{QB[u]+r}, v{QB[u]+r}, s[{sQ}:{sQ+3}], 0 offen")
            if r in (1,3,5): trans('rcp', Z0, rr, rr+1); rr+=1
            if r == 5: seg(2)
            if r in (7,9,11,13,15): trans('rcp', Z0, rr, rr+1); rr+=1
        a.label(f"{L}_qd")
        def w2blk():
            a.label(f"{L}_w2")
            a(f"s_add_u32 s{t0}, s{sW2}, {u*4096}")
            rr=2
            for r in range(16):
                a(f"buffer_load_dword v{QB[u]+r}, v{vW2}, s[{sWS}:{sWS+3}], s{t0} offen offset:{r*256}")
                if r in (1,3,5): trans('rcp', Z0, rr, rr+1); rr+=1
                if r == 5: seg(2)
                if r in (7,9,11,13,15): trans('rcp', Z0, rr, rr+1); rr+=1
            a(f"s_branch {L}_qd")
        outl.append(w2blk)
        seg(3); trans('rcp', Z0, 10, 16)
        pkmul(Z0); patch(nu)
        a(f"s_cmp_eq_u32 s{sT}, s{sEvF}\ns_cbranch_scc1 {L}_fl")
        for d in range(8): a(f"v_cvt_pk_bf16_f32 v{M0+d}, v{EE+2*d}, v{EE+2*d+1}")
        a.label(f"{L}_fld")
        def flblk():
            a.label(f"{L}_fl"); flush(True, True); a(f"s_branch {L}_fld")
        outl.append(flblk)
        a(f"ds_write_b16 v{vSa}, v{vZero}\nds_write_b16 v{vSa}, v{vZero} offset:64")
        a(f"s_cmp_eq_u32 s{sT}, s{sEvS}\ns_cbranch_scc1 {L}_sw")
        a.label(f"{L}_swd")
        def swblk():
            a.label(f"{L}_sw")
            a(f"s_mov_b64 exec, s[{sSwap}:{sSwap+1}]")
            for k in range(8): a(f"v_mov_b32 v{PP+k}, v{F23+k}")
            a(f"""s_mov_b64 exec, -1
s_not_b64 s[{sSwap}:{sSwap+1}], s[{sSwap}:{sSwap+1}]
s_add_u32 s{sEvF}, s{sEvS}, 1
s_mov_b32 s{sEvS}, s{sEv1}
s_mov_b32 s{sEv1}, s{sEv2}
s_mov_b32 s{sEv2}, 0x10000
s_branch {L}_swd""")
        outl.append(swblk)
        a(f"""v_xor_b32 v{vSa}, v{vCode[u]}, v{vSbase}
v_cndmask_b32 v{vR2}, v{vR[u]}, 1.0, s[{sLo}:{sLo+1}]
ds_write_b16 v{vSa}, v{vR[u]} offset:64
ds_write_b16_d16_hi v{vSa}, v{vR2}""")
        mfma(a, Z0, EA, WA, None); trans('exp', Z1, 0, 2)
        a(f"ds_read_b128 {R(SF,4)}, v{vSrd[0]}\nds_read_b128 {R(SF+4,4)}, v{vSrd[1]}")
        trans('exp', Z1, 2, 5)
        mfma(a, Z0, PA, PP, Z0); trans('exp', Z1, 5, 10)
        a("s_waitcnt vmcnt(16)")
        mfma(a, Z0, SEL, QB[nu], Z0); trans('exp', Z1, 10, 16)
        pkadd()
        mfma(a, Z0, SEL+4, QB[nu]+4, Z0); trans('rcp', Z1, 0, 5)
        mfma(a, Z0, SEL+8, QB[nu]+8, Z0); trans('rcp', Z1, 5, 10)
        mfma(a, Z0, SEL+12, QB[nu]+12, Z0); trans('rcp', Z1, 10, 16)
        pkmul(Z1)
        if u == 1: a(f"v_add_u32 v{vIdx}, 1280, v{vIdx}\nv_add_u32 v{vX}, 1280, v{vX}")
        a(f"s_add_u32 s{sT}, s{sT}, 1\ns_cmp_eq_u32 s{sT}, s{sNT}")
        for d in range(8): a(f"v_cvt_pk_bf16_f32 v{M1+d}, v{EE+2*d}, v{EE+2*d+1}")
    ts("loop")
    a.label(f"{E}_loop")
    body(0); a(f"s_cbranch_scc1 {E}_tail")
    body(1); a(f"s_cbranch_scc0 {E}_loop")
    a.label(f"{E}_tail")
    ts("tail")
    a(f"v_lshlrev_b32 v14, 4, v{vLane}\ns_add_u32 s{t0}, s{sW2}, 8192\ns_add_u32 s{t1}, s{sW2}, 12288")
    for f in range(8): a(f"buffer_load_dwordx4 {R(Z1+4*f,4)}, v14, s[{sWS}:{sWS+3}], s{t0 if f<4 else t1} offen offset:{(f&3)*1024}")
    a("s_waitcnt lgkmcnt(0)")
    for i in range(4): seg(i)
    hreg={}
    n=0
    for r in range(16):
        if r&7 == 7: continue
        hreg[r]=SEL+n; n+=1
        a(f"buffer_load_dword v{hreg[r]}, v{vOutA if r<8 else vOutB}, s[{sHH}:{sHH+3}], 0 offen offset:{(r&7)*256}")
    a(f"s_cmp_lg_u32 s{sT}, s{sEvF}\ns_cbranch_scc1 {E}_nofl")
    flush(True, False)
    a.label(f"{E}_nofl")
    flush(False, False)
    a("s_waitcnt lgkmcnt(0)\ns_barrier")
    ts("bar")
    for k in range(8): aread(k)
    W2R=[QB[0]+4*f for f in range(8)]+[Z1+4*f for f in range(8)]
    a("s_waitcnt vmcnt(14)")
    for k in range(8):
        a(f"s_waitcnt lgkmcnt({7-k})")
        for z in range(2): mfma(a, YY+16*z, TT+4*k, W2R[2*k+z], YY+16*z)
    a(f"s_add_u32 s{sWin}, s{sWin}, s{sWn}\ns_cmp_lt_u32 s{sWin}, s{sTot}\ns_cbranch_scc1 {E}_more")
    a("s_waitcnt vmcnt(0)")
    a(f"s_cmp_lt_u32 s{sW}, 4\ns_cbranch_scc1 {E}_nopos\ns_cmp_eq_u32 s{sW}, 7\ns_cbranch_scc1 {E}_nopos")
    srd(a, sTAB, 24, 150000, 6400000)
    a(f"v_subrev_u32 v6, 256, v0\nv_lshlrev_b32 v7, 1, v6\ns_movk_i32 s{t0}, 0x5556")
    for x in range(2):
        a(f"""v_add_u32 v8, {x}, v7
v_mul_u32_u24 v9, s{t0}, v8
v_lshrrev_b32 v9, 16, v9
v_mul_u32_u24 v10, 3, v9
v_sub_u32 v8, v8, v10
v_mul_u32_u24 v10, 147, v9
v_lshrrev_b32 v10, 10, v10
v_mul_u32_u24 v11, 7, v10
v_sub_u32 v9, v9, v11
v_add_u32 v11, 5, v10
v_lshrrev_b32 v11, 4, v11
v_add_u32 v10, v10, v11
v_lshl_add_u32 v9, v10, 3, v9
v_lshl_add_u32 v9, v9, 2, v8
v_lshlrev_b32 v9, 2, v9
v_add_u32 v10, {L_PD+4}, v9
v_add_u32 v9, {L_POSD}, v9
ds_read_b32 v{12+2*x}, v10
ds_read_b32 v{13+2*x}, v9""")
    a(f"""s_mul_i32 s{t1}, s{sB}, 588
v_lshl_add_u32 v7, v6, 2, s{t1}
v_cmp_gt_u32 vcc, 147, v6
s_mov_b32 s{t0}, 0x3f317218
s_waitcnt lgkmcnt(0)
v_fma_f32 v12, v12, s{t0}, v13
v_fma_f32 v14, v14, s{t0}, v15
v_cvt_pk_bf16_f32 v12, v12, v14
s_mov_b64 exec, vcc
buffer_store_dword v12, v7, s[{sTAB}:{sTAB+3}], 0 offen
s_mov_b64 exec, -1""")
    a.label(f"{E}_nopos")
    X=QB[0]; HU=Z0
    valid=[r for r in range(16) if r&7 != 7]
    for z in range(2):
        for r in valid: a(f"v_exp_f32 v{X+16*z+r}, -v{YY+16*z+r}")
    for z in range(2):
        for r in range(0,16,2): a(f"v_pk_fma_f32 {R(X+16*z+r,2)}, {R(X+16*z+r,2)}, s[{sL2E}:{sL2E+1}], s[{sL2E}:{sL2E+1}]")
    for z in range(2):
        for r in valid: a(f"v_rcp_f32 v{X+16*z+r}, v{X+16*z+r}")
    for r in valid:
        a(f"v_lshlrev_b32 v{HU+r}, 16, v{hreg[r]}\nv_and_b32 v{HU+16+r}, s{sHi16}, v{hreg[r]}")
    for r in range(0,16,2):
        for z in range(2): a(f"v_pk_fma_f32 {R(X+16*z+r,2)}, {R(X+16*z+r,2)}, {R(YY+16*z+r,2)}, {R(HU+16*z+r,2)}")
        for rr in (r,r+1):
            if rr in valid:
                a(f"v_cvt_pk_bf16_f32 v{X+rr}, v{X+rr}, v{X+16+rr}")
                a(f"buffer_store_dword v{X+rr}, v{vOutA if rr<8 else vOutB}, s[{sOUT}:{sOUT+3}], 0 offen offset:{(rr&7)*256} {ST}")
    ts("st"); ts.dump()
    a("s_endpgm")
    a.label(f"{E}_retry")
    a(f"s_movk_i32 s{sWsz}, {WSMALL}\ns_waitcnt vmcnt(0) lgkmcnt(0)\ns_barrier\ns_branch {E}_round")
    a.label(f"{E}_more")
    a(f"s_mov_b32 s{sFirst}, 0\ns_waitcnt vmcnt(0) lgkmcnt(0)\ns_barrier\ns_branch {E}_round")
    for f in outl: f()
    a.label(f"{E}_end")
    a("s_endpgm")
    gen_k2.names=ts.names
    return a.lines, 256, K2_LDS
```

```python
from asmlib import *
from gen_k1b import *
NTILE=69; CAP=320; RPS=1296; AS=8960; AU=AS//256
TB=(0,19,38,53); TCAP=(544,544,416,448)
L_S=0; L_PA=32768; L_POSD=36864; L_PD=38912; L_CNT=40960; L_WX=41216; L_IDX=41472
L_RP=L_IDX; L_WD=L_RP+8*RPS; L_W1=L_IDX+7*AS; L_MI=L_W1+32768; K2_LDS=L_MI+98*256
assert L_WD+32768 <= L_W1 and K2_LDS <= 163840 and L_RP+8*RPS < 65536 and L_MI%256==0 and NTILE*128<=AS
vT=192; vMin=193; vTB=194; vCap=195; vBP=196; vL31=197; vC0p=198; vC1p=199; vM31=248; vBig=249; vFk=250
rC0=16; rC1=24; rE1=32; rST=40
def hkey(row):
    g=row//7; n=row-7*g; gi=g+(g>=11); return (n&3)|((gi&1)<<2)|((n>>2)<<3)
W2ROW0=(OFF_WF+WF_W2)//256
QB=(16,32); Z0=48; Z1=64; EE=80; M0=96; M1=104; SF=112; TT=120; WA=152; PP=160; F23=168; SEL=176; EA=(192,248); PA=196; YY=200; ZQ=252
vIdx=232; vX=233; vRC=(234,236); vE=238; vSa=239; vSbase=240; vSrd=(241,242); vR2=243; vMI=245; vPD=246; vWX=247
vL4=1; vLane=2; vA=3; vOutA=4; vOutB=5
REC=80; POSR=100; RANK=6; CA=11
def R(b,n): return f"v[{b}:{b+n-1}]"
def S2(b): return f"s[{b}:{b+1}]"
def S4(b): return f"s[{b}:{b+3}]"
def mfma(a,D,A,B,C): a(f"v_mfma_f32_32x32x16_bf16 {R(D,16)}, {R(A,4)}, {R(B,4)}, {R(C,16) if C is not None else 0}")
sW=3; sQ=4; sWS=16; sHH=20; sEA=24; pOUT=28; pWS=32; sTabO=34; sMore=35; sOUT=36; sPOS=40
sB=44; sH=45; sTeam=46; sRow0=47; sWin=48; sCap=49; sFirst=50; sN=51; sRPb=52; sCnt=53; sD1=54; sD2=55; sD3=56; sNT=57
sSwap=58; sLo=60; sMIm=62; sL2E=64; sOne=66; sHi16=68; sKlo=69; sKhi=70; sW2=71; sV=72
t0=82; t1=83; t2=84; t3=85; tp=86; u0=88; u1=89; u2=90; sBias=91; sTBb=92

def gen_k2(name, opt):
    a = Asm(); ts=TS(a, opt.get("TS"), [94,96,98,100,8,10,12,14,72,74,76,78,80], 1, pWS, sW, vLane, sPOS, 6); E="L_k2"
    if opt.get('TSN'): ts.only=opt['TSN'].split(',')
    SAFE=opt.get('SAFE'); ST=opt.get('ST2',''); DM=opt.get('DM')
    outl=[]
    a(f"s_cmp_ge_u32 s2, 256\ns_cbranch_scc1 {E}_end")
    ts("start")
    a(f"s_load_dwordx2 {S2(pWS)}, s[0:1], 80\ns_load_dwordx8 s[8:15], s[0:1], 0\ns_load_dwordx4 {S4(pOUT)}, s[0:1], 64")
    def tabaddr():
        a(f"""v_lshrrev_b32 v6, 1, v0
v_mov_b32 v15, {BIG}
v_cmp_gt_u32 vcc, 250, v6
v_lshlrev_b32 v7, 5, v6
v_cndmask_b32 v7, v15, v7, vcc""")
    a(f"""v_lshrrev_b32 v1, 6, v0
v_and_b32 v{vLane}, 63, v0
v_readfirstlane_b32 s{sW}, v1
s_and_b32 s{sB}, s2, 7
s_lshl_b32 s{sB}, s{sB}, 5
s_lshr_b32 s{t0}, s2, 3
s_add_u32 s{sB}, s{sB}, s{t0}
s_lshr_b32 s{t0}, s{sB}, 3
s_mul_i32 s{t0}, s{t0}, 8000
s_and_b32 s{t1}, s{sB}, 7
s_lshl_b32 s{t1}, s{t1}, 2
s_add_u32 s{t0}, s{t0}, s{t1}
s_add_u32 s{sTabO}, s{t0}, {OFF_TAB}
s_mov_b32 s{sWS+2}, {WS_USED}
s_mov_b32 s{sWS+3}, 0x20000""")
    tabaddr()
    a(f"""v_lshlrev_b32 v8, 2, v0
v_mov_b32 v10, 0
ds_write_b32 v8, v10 offset:{L_PD}
s_waitcnt lgkmcnt(0)
s_mov_b32 s{sWS}, s{pWS}
s_mov_b32 s{sWS+1}, s{pWS+1}
buffer_load_dword v9, v7, {S4(sWS)}, s{sTabO} offen""")
    srd(a, sHH, 8, 6400000)
    srd(a, sPOS, 10, 150000)
    srd(a, sEA, 12, 12800000)
    srd(a, sOUT, pOUT, 6400000)
    a(f"""s_and_b32 s{sH}, s{sW}, 1
s_lshr_b32 s{sTeam}, s{sW}, 1
s_mul_i32 s{sRow0}, s{sTeam}, 28
s_min_u32 s{sRow0}, s{sRow0}, 77
s_mov_b32 s{sWin}, 0
s_movk_i32 s{sCap}, {CAP}
s_mov_b32 s{sFirst}, 1
s_mov_b32 s{sLo}, -1
s_mov_b32 s{sLo+1}, 0
s_mov_b32 s{sMIm}, 0x01111111
s_mov_b32 s{sMIm+1}, 0x01111111
s_mov_b32 s{sHi16}, 0xffff0000
s_mov_b32 s{sL2E}, {LOG2E}
s_mov_b32 s{sL2E+1}, {LOG2E}
s_mov_b32 s{sOne}, 1.0
s_mov_b32 s{sOne+1}, 1.0
s_mov_b32 s{sKlo}, 0xbf80
s_mov_b32 s{sKhi}, 0xbf800000
s_mul_i32 s{sRPb}, s{sW}, {RPS}
s_lshl_b32 s{t0}, s{sH}, 7
s_add_u32 s{sQ}, s{pWS}, s{t0}
s_addc_u32 s{sQ+1}, s{pWS+1}, 0
s_and_b32 s{sQ+1}, s{sQ+1}, 0xffff
s_or_b32 s{sQ+1}, s{sQ+1}, 0x80000000
s_mov_b32 s{sQ+2}, 6400000
s_mov_b32 s{sQ+3}, 0xC00000
s_lshl_b32 s{sW2}, s{sH}, 13
s_add_u32 s{sW2}, s{sW2}, {OFF_WF+WF_W2+16384}""")
    if SAFE: a("s_mov_b32 s93, 0")
    a(f"s_cmp_lt_u32 s{sW}, 4\ns_cbranch_scc1 {E}_lo")
    if opt.get('PRIO','1')=='1': a("s_setprio 1")
    a.label(f"{E}_lo")
    a.label(f"{E}_round")
    vm=['tab']
    def V(tag, text):
        for l in text.split("\n"):
            a(l)
            if l.startswith('buffer_'): vm.append(tag)
    def younger(tag):
        return len(vm)-1-max(i for i,t in enumerate(vm) if t==tag)
    WDP=opt.get('WDP','0'); SMP=opt.get('SMP','2'); W1P=opt.get('W1P','3')
    def wd():
        a(f"s_lshl_b32 s{t3}, s{sW}, 12\ns_add_u32 m0, s{t3}, {L_WD}\ns_add_u32 s{t0}, s{t3}, {OFF_WF+WF_WD}")
        for m in range(4): V('wd', f"buffer_load_dwordx4 v14, {S4(sWS)}, s{t0} offen offset:{m*1024} lds")
    def w1(v):
        a(f"s_lshl_b32 s{t3}, s{sW}, 12\ns_add_u32 m0, s{t3}, {L_W1}\ns_add_u32 s{t0}, s{t3}, {OFF_WF+WF_W1}")
        for m in range(4): V('w1', f"buffer_load_dwordx4 v{v}, {S4(sWS)}, s{t0} offen offset:{m*1024} lds")
    def small():
        V('sm', f"""s_lshl_b32 s{t2}, s{sH}, 9
s_add_u32 s{t2}, s{t2}, {OFF_WF+WF_WDI}
buffer_load_dword v{ZQ+2}, v{vL4}, {S4(sWS)}, s{t2} offen
buffer_load_dword v{ZQ+3}, v{vL4}, {S4(sWS)}, s{t2} offen offset:256""")
        V('sm2', f"""s_lshl_b32 s{t2}, s{sH}, 11
s_add_u32 s{t2}, s{t2}, {OFF_WF+WF_WA}
buffer_load_dwordx4 {R(WA,4)}, v14, {S4(sWS)}, s{t2} offen
buffer_load_dwordx4 {R(WA+4,4)}, v14, {S4(sWS)}, s{t2} offen offset:1024
s_mov_b32 m0, {L_WX}
s_mov_b32 s{t0}, {OFF_WF+WF_WX}
buffer_load_dword v{vL4}, {S4(sWS)}, s{t0} offen lds""")
    def at(pos, v=14):
        if WDP==pos: wd()
        if SMP==pos: small()
        if W1P==pos: w1(v)
    KT=[[sum(hkey(32*m+4*w+q)<<(4*q+16*(w&1)) for w in (2*w2,2*w2+1) for q in range(4)) for w2 in range(4)] for m in range(3)]
    a(f"""v_lshlrev_b32 v14, 4, v{vLane}
v_lshlrev_b32 v{vL4}, 2, v{vLane}
v_lshrrev_b32 v7, 4, v{vLane}
v_and_b32 v8, 15, v{vLane}
s_lshl_b32 s{t0}, s{sH}, 4
v_lshl_add_u32 v10, v7, 2, s{t0}
v_lshlrev_b32 v11, 8, v7""")
    for m in range(3): a(f"s_mov_b32 s{u0+m}, {hex(KT[m][0])}")
    for w2 in range(1,4):
        a(f"s_cmp_eq_u32 s{sTeam}, {w2}")
        for m in range(3): a(f"s_cselect_b32 s{u0+m}, {hex(KT[m][w2])}, s{u0+m}")
    a(f"s_mul_i32 s{t1}, s{sB}, {98*256}\ns_lshl_b32 s{t3}, s{sW}, 10\ns_add_u32 s{t2}, s{t1}, s{t3}")
    for m in range(3):
        a(f"v_bfe_u32 v{16+m}, s{u0+m}, v10, 4\nv_xor_b32 v{16+m}, v{16+m}, v8\nv_lshl_add_u32 v{16+m}, v{16+m}, 4, v11")
        V('h', f"s_add_u32 m0, s{t3}, {L_MI+m*8192}\ns_add_u32 s{t0}, s{t2}, {m*8192}\nbuffer_load_dwordx4 v{16+m}, {S4(sHH)}, s{t0} offen lds")
    assert hkey(96)==9 and hkey(97)==10
    V('h', f"""v_add_u32 v10, 9, v7
v_xor_b32 v10, v10, v8
v_lshl_add_u32 v19, v10, 4, v11
s_add_u32 s{t0}, s{t1}, {96*256}
s_mov_b32 m0, {L_MI+24*1024}
s_mov_b64 exec, {S2(sLo)}
buffer_load_dwordx4 v19, {S4(sHH)}, s{t0} offen lds
s_mov_b64 exec, -1""")
    V('h', f"""v_lshrrev_b32 v7, 3, v0
s_mul_i32 s{t1}, s{sB}, 98
v_sub_u32 v7, v0, v7
v_cmp_lt_u32 vcc, 95, v0
v_add_u32 v7, s{t1}, v7
v_subrev_u32 v8, 7, v7
v_cndmask_b32 v7, v7, v8, vcc
v_cmp_gt_u32 vcc, 120, v0
v_and_b32 v22, 1, v7
v_mul_u32_u24 v7, 6, v7
v_lshlrev_b32 v22, 4, v22
v_and_b32 v7, -4, v7
v_cndmask_b32 v7, v15, v7, vcc
buffer_load_dwordx2 v[20:21], v7, {S4(sPOS)}, 0 offen""")
    at('0')
    def grp_base(a):
        a(f"""v_and_b32 v{vL31}, 31, v{vLane}
v_lshrrev_b32 v47, 5, v{vLane}""")
    def grp_a(a):
        a(f"""v_lshrrev_b32 v40, 4, v{vL31}
v_bfe_u32 v41, v{vL31}, 2, 1
v_lshl_add_u32 v40, v40, 1, v41
v_and_b32 v41, 3, v{vL31}
v_bfe_u32 v42, v{vL31}, 3, 1
v_lshl_add_u32 v41, v42, 2, v41
v_mul_u32_u24 v43, 7, v40
v_add3_u32 v43, v43, v41, s{sRow0}
v_min_u32 v43, 97, v43
v_and_b32 v44, 15, v{vL31}
v_xor_b32 v44, v44, v47
v_lshlrev_b32 v44, 4, v44
v_lshl_add_u32 v43, v43, 8, v44
v_add_u32 v{vA}, {L_MI}, v43
s_lshl_b32 s{u0}, s{sW}, 12
v_lshlrev_b32 v40, 4, v40
v_lshl_add_u32 v40, v41, 1, v40
v_add_u32 v{vSbase}, s{u0}, v40
v_bfe_u32 v40, v{vL31}, 2, 2
v_xor_b32 v40, v40, v47
v_lshlrev_b32 v40, 4, v40
v_lshl_add_u32 v40, v{vL31}, 6, v40
v_add_u32 v{vSrd[0]}, s{u0}, v40
v_xor_b32 v{vSrd[1]}, 32, v{vSrd[0]}
v_mov_b32 v{vSa}, v{vSbase}""")
    def grp_mi(a):
        a(f"""v_lshrrev_b32 v40, 2, v{vL31}
v_and_b32 v41, 3, v40
v_lshrrev_b32 v42, 2, v40
v_lshl_add_u32 v41, v42, 3, v41
s_lshl_b32 s{u0}, s{sH}, 3
v_xor_b32 v41, s{u0}, v41
v_xor_b32 v41, v41, v47
v_lshlrev_b32 v41, 4, v41
s_add_u32 s{u0}, s{sRow0}, {L_MI//256}
v_add_u32 v40, s{u0}, v40
v_lshl_add_u32 v{vMI}, v40, 8, v41
s_lshl_b32 s{u0}, s{sTeam}, 9
s_add_u32 s{u0}, s{u0}, {L_PD}
v_lshl_add_u32 v{vPD}, v{vL31}, 2, s{u0}
s_lshl_b32 s{u0}, s{sH}, 7
s_add_u32 s{u0}, s{u0}, {L_WX}
v_lshl_add_u32 v{vWX}, v47, 4, s{u0}""")
    def grp_out(a):
        a(f"""s_mul_i32 s{u0}, s{sB}, 98
s_add_u32 s{u0}, s{u0}, s{sRow0}
s_lshl_b32 s{u0}, s{u0}, 8
s_lshl_b32 s{u1}, s{sH}, 7
s_add_u32 s{u0}, s{u0}, s{u1}
v_mul_u32_u24 v40, 1792, v47
v_lshl_add_u32 v40, v{vL31}, 2, v40
v_add_u32 v{vOutA}, s{u0}, v40
s_cmp_ge_u32 s{sTeam}, 2
s_cselect_b32 s{u1}, {BIG}, 0
v_mul_lo_u32 v40, v47, s{u1}
v_add_u32 v{vOutB}, 3584, v{vOutA}
v_add_u32 v{vOutB}, v{vOutB}, v40
s_mov_b64 {S2(sSwap)}, {S2(sLo)}""")
    def grp_sel(a):
        a(f"v_mov_b32 v46, 0x3f80\ns_mov_b32 s{tp}, 1\ns_mov_b32 s{tp+1}, 16")
        for g in range(4):
            for j in range(4):
                a(f"v_cndmask_b32 v{SEL+4*g+j}, 0, v46, {S2(tp)}")
                if (g,j)!=(3,3): a(f"s_lshl_b64 {S2(tp)}, {S2(tp)}, {1 if j<3 else 5}")
    def nib(vals, w): return hex(sum(v<<(w*i) for i,v in enumerate(vals)))
    def grp_scan(a):
        a(f"""v_and_b32 v40, 3, v{vLane}
v_bfe_u32 v41, v{vLane}, 2, 2
v_lshl_add_u32 v42, v40, 2, v41
v_lshlrev_b32 v{vT}, 2, v42
s_mov_b32 s{u0}, 0xc000c000
s_mov_b32 s{u0+1}, 0xc000c000
v_cndmask_b32 v{vMin}, 64, 0, {S2(u0)}
v_lshlrev_b32 v40, 3, v40
s_mov_b32 s{u0}, {nib(TB,8)}
v_bfe_u32 v42, s{u0}, v40, 8
s_movk_i32 s{u0}, {L_IDX//4}
v_lshl_add_u32 v{vTB}, v42, 5, s{u0}
s_mov_b32 s{u0}, {nib([c//32 for c in TCAP],8)}
v_bfe_u32 v42, s{u0}, v40, 8
v_lshlrev_b32 v{vCap}, 5, v42
s_mov_b32 s{u0}, 0xf000f000
s_mov_b32 s{u0+1}, 0xf000f000
v_cndmask_b32 v{vM31}, 0, 31, {S2(u0)}
s_lshl_b32 s{u0}, s{sH}, 3
s_add_u32 s{u0}, s{u0}, s{sTeam}
s_lshl_b32 s{u0}, s{u0}, 2
v_lshl_add_u32 v{vBP}, v47, 4, s{u0}
v_mov_b32 v{vC0p}, {7*256+48}
v_mov_b32 v{vC1p}, {(7*256+48)^128}
v_mov_b32 v{vBig}, {BIG}
s_lshl_b32 s{u0}, s{sTeam}, 3
s_lshr_b32 s{u0}, {nib(TB,8)}, s{u0}
s_and_b32 s{u0}, s{u0}, 0xff
s_lshl_b32 s{u0}, s{u0}, 7
s_add_u32 s{sTBb}, s{u0}, {L_IDX}
v_lshl_add_u32 v{vIdx}, v47, 4, s{sTBb}
s_movk_i32 s{u0}, {AS}
v_mad_u32_u24 v40, v47, s{u0}, s{u0}
v_lshl_add_u32 v40, v{vL31}, 2, v40
v_add_u32 v{vX}, s{sTBb}, v40""")
    def grp_zero(a):
        a(f"""v_mov_b32 v40, 0
v_mov_b32 v41, 0
v_mov_b32 v42, 0
v_mov_b32 v43, 0
s_lshl_b32 s{u0}, s{sW}, 12
v_add_u32 v44, s{u0}, v14
ds_write_b32 v{vL4}, v40 offset:{L_CNT}""")
        for m in range(4): a(f"ds_write_b128 v44, v[40:43] offset:{L_S+m*1024}")
    def grp_pa(a):
        a(f"s_cmp_eq_u32 s{sW}, {opt.get('PAW','3')}\ns_cbranch_scc1 {E}_pa")
        a.label(f"{E}_pad")
    def pablk():
        a.label(f"{E}_pa")
        a(f"""v_mov_b32 v46, 0x3f80
v_bfe_u32 v40, v{vLane}, 4, 1
v_bfe_u32 v41, v{vLane}, 1, 3
v_and_b32 v42, 1, v{vLane}
v_lshlrev_b32 v43, 11, v40
v_lshl_add_u32 v43, v41, 8, v43
v_lshl_add_u32 v43, v42, 7, v43
v_and_b32 v44, 3, v41
v_lshl_add_u32 v43, v44, 4, v43
v_xor_b32 v40, v40, v42
v_lshl_add_u32 v40, v40, 4, v41""")
        for d in range(4):
            a(f"v_cmp_eq_u32 vcc, {2*d}, v40\nv_cndmask_b32 v{36+d}, 0, v46, vcc")
            if d < 3: a(f"v_cmp_eq_u32 vcc, {2*d+1}, v40\nv_cndmask_b32 v{36+d}, v{36+d}, 1.0, vcc")
        a(f"ds_write_b128 v43, v[36:39] offset:{L_PA}\ns_branch {E}_pad")
    outl.append(pablk)
    GR=dict(a=grp_a, m=grp_mi, o=grp_out, s=grp_sel, c=grp_scan, z=grp_zero, p=grp_pa)
    SO=opt.get('SO','zasc.p.mo').split('.')
    grp_base(a)
    for g in SO[0]: GR[g](a)
    a(f"""v_and_b32 v12, 1, v0
v_cmp_eq_u32 vcc, 0, v12
v_mul_u32_u24 v6, 1600, v6
s_mov_b32 s{sBias}, {-DBIAS*32}
s_waitcnt vmcnt({younger('tab')})""")
    ts("tab")
    at('1')
    a(f"""v_lshrrev_b32 v10, 16, v9
v_and_b32 v9, 0xffff, v9
v_cndmask_b32 v11, 0, v10, vcc
v_add_u32 v9, v9, v6""")
    wave_scan(a, 11)
    a(f"""v_readlane_b32 s{t0}, v11, 63
v_sub_u32 v11, v11, v10
v_sub_u32 v13, v10, v12
s_sub_u32 s{t1}, s{t0}, s{sWin}
s_min_u32 s{sN}, s{t1}, s{sCap}
s_sub_u32 s{sMore}, s{t1}, s{sN}
v_subrev_u32 v11, s{sWin}, v11
v_sub_u32 v9, v9, v11
v_add_lshl_u32 v11, v11, v12, 2
s_cmp_lg_u32 s{t0}, s{sN}
s_cbranch_scc1 {E}_exp
v_add_u32 v7, s{sRPb}, v11""")
    for k in range(8): a(f"v_cmpx_lt_i32 vcc, {2*k}, v13\nds_write_b32 v7, v9 offset:{L_RP+8*k}")
    a(f"v_cmpx_lt_i32 vcc, 16, v13\ns_cbranch_execnz {E}_exp2")
    a.label(f"{E}_expd")
    def expblk():
        a.label(f"{E}_exp2")
        a("v_add_u32 v12, 16, v12\nv_add_u32 v11, 64, v11")
        a.label(f"{E}_exp")
        a(f"s_lshl_b32 s{t1}, s{sN}, 2")
        a.label(f"{E}_expl")
        a(f"""v_cmpx_lt_u32 vcc, v12, v10
s_cbranch_execz {E}_expd
v_min_u32 v7, s{t1}, v11
v_add_u32 v7, s{sRPb}, v7
ds_write_b32 v7, v9 offset:{L_RP}
v_add_u32 v12, 2, v12
v_add_u32 v11, 8, v11
s_branch {E}_expl""")
    outl.append(expblk)
    a(f"s_mov_b64 exec, -1\nv_add_u32 v7, s{sRPb}, v{vL4}")
    for i in range(4): a(f"ds_read_b32 v{REC+4*i+3}, v7 offset:{L_RP+i*256}")
    for i in range(5):
        a(f"s_sub_u32 s{t0}, s{sN}, {64*i}\nv_cmp_gt_i32 {S2(sV+2*i)}, s{t0}, v{vLane}")
    a(f"s_mov_b32 s{t1}, {OFF_REC}")
    def recld(i, cnt=True):
        p=REC+4*i+3
        if i: a(f"v_add3_u32 v{p}, v{p}, v{vLane}, s{t0}" if 64*i>64 else f"v_add3_u32 v{p}, v{p}, v{vLane}, 64")
        else: a(f"v_add_u32 v{p}, v{p}, v{vLane}")
        a(f"""v_mul_u32_u24 v{p-3}, 12, v{p}
v_cndmask_b32 v{p-3}, v15, v{p-3}, {S2(sV+2*i)}
buffer_load_dwordx3 {R(p-3,3)}, v{p-3}, {S4(sWS)}, s{t1} offen""")
        if cnt: vm.append('rec')
    for i in range(4):
        if i>1: a(f"s_movk_i32 s{t0}, {64*i}")
        a(f"s_waitcnt lgkmcnt({3-i})"); recld(i)
    def fifth(tag, fn):
        a(f"s_cmp_gt_u32 s{sN}, 256\ns_cbranch_scc1 {E}_5{tag}")
        a.label(f"{E}_5{tag}d")
        def blk():
            a.label(f"{E}_5{tag}"); fn(); a(f"s_branch {E}_5{tag}d")
        outl.append(blk)
    def f5a():
        a(f"ds_read_b32 v{REC+19}, v7 offset:{L_RP+1024}\ns_movk_i32 s{t0}, 256\ns_waitcnt lgkmcnt(0)"); recld(4, False)
        a(f"v_lshl_add_u32 v{REC+19}, v{REC+19}, 5, s{sBias}")
    fifth('a', f5a)
    ts("rec")
    at('2')
    for i in range(4): a(f"v_lshl_add_u32 v{REC+4*i+3}, v{REC+4*i+3}, 5, s{sBias}")
    for g in SO[1]: GR[g](a)
    a(f"""s_lshl_b32 s{t0}, s{sH}, 14
s_add_u32 s{t1}, s{t0}, {L_WD}
v_add_u32 v12, s{t1}, v14
v_lshlrev_b32 v10, 4, v0
s_waitcnt vmcnt({min(younger('h'),younger('wd'))})
v_alignbit_b32 v20, v21, v20, v22
v_lshrrev_b32 v21, v22, v21
v_lshlrev_b32 v24, 16, v20
v_and_b32 v25, s{sHi16}, v20
v_lshlrev_b32 v26, 16, v21
v_mov_b32 v27, 0
v_cmp_gt_u32 vcc, 128, v0
s_mov_b64 exec, vcc
ds_write_b128 v10, v[24:27] offset:{L_POSD}
s_mov_b64 exec, -1
s_waitcnt lgkmcnt(0)
s_barrier""")
    ts("b1")
    def aread(k, base=None):
        d=TT+4*k if base is None else base[k]
        if k == 0: a(f"ds_read_b128 {R(d,4)}, v{vA}")
        else: a(f"v_xor_b32 v9, {32*k}, v{vA}\nds_read_b128 {R(d,4)}, v9")
    ZZ=(Z0,Z1)
    BF=[16,24,32,100,108]
    late=[]
    for g in SO[2]: late+=cap(GR[g])
    for k in range(4):
        aread(k)
        for z in range(2): a(f"ds_read_b128 {R(BF[k]+4*z,4)}, v12 offset:{(2*k+z)*1024}")
    for k in range(8):
        a(f"s_waitcnt lgkmcnt({9 if k<5 else 3*(7-k)})")
        for z in range(2): mfma(a, ZZ[z], TT+4*k, BF[k%5]+4*z, ZZ[z] if k else None)
        if k<4:
            aread(k+4)
            for z in range(2): a(f"ds_read_b128 {R(BF[(k+4)%5]+4*z,4)}, v12 offset:{(2*k+8+z)*1024}")
        n=(len(late)+(7-k))//(8-k)
        for l in late[:n]: a(l)
        late=late[n:]
    a(f"s_waitcnt vmcnt({younger('sm')})")
    for z in range(2):
        D=ZZ[z]
        for r in range(0,16,2): a(f"v_pk_mul_f32 {R(D+r,2)}, {R(D+r,2)}, {S2(sL2E)}")
        for hh in range(2):
            o=(PP,F23)[hh]+4*z
            for d in range(4): a(f"v_cvt_pk_bf16_f32 v{o+d}, v{D+8*hh+2*d}, v{D+8*hh+2*d+1}")
            a(f"v_bfi_b32 v{o+3}, s{sHi16}, v{ZQ+2+z}, v{o+3}")
    for r in range(4): a(f"v_mov_b32 v{ZQ+r}, 0")
    a(f"v_mov_b32 v46, 1\nv_mov_b32 v45, s{sMore}\nv_lshlrev_b32 v44, 4, v{vLane}\ns_waitcnt vmcnt({younger('rec')})")
    ts("recw")
    def rank(i):
        r=REC+4*i
        a(f"""v_lshrrev_b32 v{CA+i}, 25, v{r}
v_lshlrev_b32_sdwa v{POSR+4*i}, 4, v{r} dst_sel:DWORD dst_unused:UNUSED_PAD src0_sel:DWORD src1_sel:BYTE_3
v_and_b32 v{CA+i}, 60, v{CA+i}
s_mov_b64 exec, {S2(sV+2*i)}
ds_add_rtn_u32 v{RANK+i}, v{CA+i}, v46 offset:{L_CNT}
s_mov_b64 exec, -1
ds_read_b128 {R(POSR+4*i,4)}, v{POSR+4*i} offset:{L_POSD}""")
    def pre(i):
        r=REC+4*i
        a(f"""v_bfe_u32 v{rC0+i}, v{r}, 16, 12
v_mad_u32_u16 v{r+3}, v{r+2}, 32, v{r+3} op_sel:[1,0,0,0]
v_mad_u32_u16 v{r}, v{r}, 8, 0
v_xor_b32 v{rC1+i}, 128, v{rC0+i}
v_add_u32 v{rE1+i}, 16, v{r+3}""")
    def diffs(I):
        for i in I:
            r=REC+4*i; d=POSR+4*i
            a(f"v_dot2_f32_bf16 v{d}, v{r+1}, s{sKlo}, v{d}\nv_dot2_f32_bf16 v{d+1}, v{r+1}, s{sKhi}, v{d+1}\nv_dot2_f32_bf16 v{d+2}, v{r+2}, s{sKlo}, v{d+2}")
        for i in I:
            d=POSR+4*i
            a(f"v_cvt_pk_bf16_f32 v{d+1}, v{d+2}, v{d+1}\nv_cvt_pk_bf16_f32 v{d+2}, v{d}, 0")
        for i in I:
            d=POSR+4*i; a(f"v_dot2_f32_bf16 v{d+3}, v{d+1}, v{d+1}, 0")
        for i in I:
            d=POSR+4*i; a(f"v_dot2_f32_bf16 v{d+3}, v{d+2}, v{d+2}, v{d+3}")
        for i in I:
            d=POSR+4*i; a(f"v_cvt_pk_bf16_f32 v{d}, v{d}, v{d+3}")
    for i in range(4): rank(i)
    def f5b():
        rank(4); pre(4); a("s_waitcnt lgkmcnt(0)"); diffs([4])
    fifth('b', f5b)
    a(f"s_mov_b64 exec, 1\nds_or_b32 v{ZQ}, v45 offset:{L_CNT+64}\ns_mov_b64 exec, -1")
    at('3', 44)
    for i in range(4): pre(i)
    a("s_waitcnt lgkmcnt(0)")
    DB=opt.get('DB','1')=='1'
    if DB: diffs(range(4))
    a(f"s_barrier")
    ts("b2")
    a(f"""ds_read_b32 v21, v{vT} offset:{L_CNT}
ds_read_b32 v22, v{ZQ} offset:{L_CNT+64}""")
    if not DB: diffs(range(4))
    a(f"""s_add_u32 s{t1}, s{sTeam}, 4
s_add_u32 s{t2}, s{sTeam}, 8
s_add_u32 s{t3}, s{sTeam}, 12
s_waitcnt lgkmcnt(1)
v_max_u32 v23, v21, v{vMin}
v_sub_u32 v31, v{vTB}, v23
v_sub_u32 v38, v23, v21
v_add_u32_dpp v29, v23, v23 row_shr:4 row_mask:0xf bank_mask:0xf bound_ctrl:1
v_add_u32 v37, v31, v21
v_lshlrev_b32 v{vFk}, 3, v{vLane}
v_add_u32_dpp v29, v29, v29 row_shr:8 row_mask:0xf bank_mask:0xf bound_ctrl:1
v_add_u32 v30, v29, v31
ds_write_b32 v{vT}, v30 offset:{L_CNT+128}""")
    for i in range(4): a(f"ds_read_b32 v{rST+i}, v{CA+i} offset:{L_CNT+128}")
    a(f"""v_cmp_gt_u32 vcc, v29, v{vCap}
v_sub_u32 v39, 0, v29
v_add_u32 v37, v37, v29
v_and_b32 v39, v{vM31}, v39
v_add_u32 v38, v38, v39
s_cbranch_vccnz {E}_retry
ds_bpermute_b32 v45, v{vBP}, v37
ds_bpermute_b32 v46, v{vBP}, v38
v_readlane_b32 s{sCnt}, v29, s{sTeam}
v_readlane_b32 s{sD1}, v29, s{t1}
v_readlane_b32 s{sD2}, v29, s{t2}
v_readlane_b32 s{sNT}, v29, s{t3}
s_waitcnt lgkmcnt(2)""")
    ts("_gsc")
    def blkw(i):
        r=REC+4*i; d=POSR+4*i; b=rST+i
        a(f"""s_mov_b64 exec, {S2(sV+2*i)}
ds_write_b32 v{b}, v{r}
ds_write2st64_b32 v{b}, v{d}, v{d+1} offset0:{AU} offset1:{2*AU}
ds_write2st64_b32 v{b}, v{rC0+i}, v{rC1+i} offset0:{3*AU} offset1:{4*AU}
ds_write2st64_b32 v{b}, v{r+3}, v{rE1+i} offset0:{5*AU} offset1:{6*AU}""")
    for i in range(4): a(f"v_add_lshl_u32 v{rST+i}, v{rST+i}, v{RANK+i}, 2")
    for i in range(4):
        blkw(i)
        if i==1: a("s_waitcnt lgkmcnt(8)")
    a("s_mov_b64 exec, -1")
    def f5d():
        a(f"ds_read_b32 v{rST+4}, v{CA+4} offset:{L_CNT+128}\ns_waitcnt lgkmcnt(0)\nv_add_lshl_u32 v{rST+4}, v{rST+4}, v{RANK+4}, 2"); blkw(4); a("s_mov_b64 exec, -1")
    fifth('d', f5d)
    ts("_blk")
    clamp=''
    if SAFE: clamp=''.join(f"s_min_i32 s{x}, s{x}, 64\ns_max_i32 s{x}, s{x}, {lo}\n" for x,lo in ((sCnt,0),(sD1,0),(sD2,0),(sD3,-1)))
    a(f"""s_add_u32 s{sNT}, s{sNT}, 31
s_lshr_b32 s{sNT}, s{sNT}, 5
s_sub_u32 s{sCnt}, s{sCnt}, 1
s_lshr_b32 s{sCnt}, s{sCnt}, 5
s_sub_u32 s{sD1}, s{sD1}, 1
s_lshr_b32 s{sD1}, s{sD1}, 5
s_sub_u32 s{sD2}, s{sD2}, 1
s_lshr_b32 s{sD2}, s{sD2}, 5
s_sub_u32 s{sD3}, s{sNT}, s{sD2}
s_sub_u32 s{sD3}, s{sD3}, 2
s_sub_u32 s{sD2}, s{sD2}, s{sD1}
s_sub_u32 s{sD2}, s{sD2}, 1
s_sub_u32 s{sD1}, s{sD1}, s{sCnt}
s_sub_u32 s{sD1}, s{sD1}, 1
{clamp}s_add_u32 s{t1}, s{sNT}, s{sH}
s_lshl_b32 s{t2}, s{t1}, 7
s_add_u32 s{t0}, s{sTBb}, s{t2}
s_and_b32 s{t1}, s{t1}, 1
s_lshl_b32 s{t1}, s{t1}, 8
s_add_u32 s{t1}, s{t1}, {W2ROW0*8}
v_add_u32 v34, s{t0}, v{vL4}
v_add_u32 v35, s{t1}, v{vFk}
v_add_lshl_u32 v45, v45, v{vL31}, 2
s_mov_b64 exec, {S2(sLo)}
ds_write_b32 v34, v35
s_mov_b64 exec, -1""")
    def padw():
        a(f"""ds_write_b32 v45, v{ZQ}
ds_write2st64_b32 v45, v{ZQ}, v{ZQ} offset0:{AU} offset1:{2*AU}
ds_write2st64_b32 v45, v{vC0p}, v{vC1p} offset0:{3*AU} offset1:{4*AU}
ds_write2st64_b32 v45, v{vBig}, v{vBig} offset0:{5*AU} offset1:{6*AU}""")
    a(f"v_cmp_lt_u32 {S2(tp)}, 32, v46\nv_cmpx_gt_u32 vcc, v46, v{vL31}")
    padw()
    a(f"s_cmp_lg_u64 {S2(tp)}, 0\ns_cbranch_scc1 {E}_padl")
    a.label(f"{E}_padd")
    def padblk():
        a.label(f"{E}_padl")
        a(f"v_subrev_u32 v46, 32, v46\nv_add_u32 v45, 128, v45\nv_cmpx_gt_i32 vcc, v46, v{vL31}\ns_cbranch_execz {E}_padd")
        padw()
        a(f"s_branch {E}_padl")
    outl.append(padblk)
    a("s_mov_b64 exec, -1")
    ts("_pad")
    a(f"v_readfirstlane_b32 s{sMore}, v22\ns_waitcnt vmcnt(0) lgkmcnt(0)\ns_barrier")
    ts("b3")
    def qload(u, r):
        if SAFE: a(f"v_and_b32 v{QB[u]+r}, 0xffff8, v{QB[u]+r}")
        if opt.get('Q0'): a(f"buffer_load_dword v{QB[u]+r}, v{ZQ}, {S4(sQ)}, 0 offen")
        else: a(f"buffer_load_dword v{QB[u]+r}, v{QB[u]+r}, {S4(sQ)}, 0 offen")
    def eaload(u, v): a(f"buffer_load_dwordx4 {R(EA[u],4)}, v{ZQ if opt.get('E0') else v}, {S4(sEA)}, 0 offen")
    for u in range(2):
        a(f"ds_read_b32 v{6+u}, v{vX} offset:{4*AS+u*128}")
        for q in range(4): a(f"ds_read_b128 {R(QB[u]+4*q,4)}, v{vIdx} offset:{u*128+q*32}")
    a(f"ds_read2st64_b32 {R(vRC[0],2)}, v{vX} offset1:{2*AU}")
    a("s_waitcnt lgkmcnt(10)"); eaload(0, 6)
    for r in range(16):
        if r%4==0: a(f"s_waitcnt lgkmcnt({9-r//4})")
        qload(0, r)
    a("s_waitcnt lgkmcnt(0)"); eaload(1, 7)
    a(f"ds_read_b128 {R(PA,4)}, v{vRC[0]+1} offset:{L_PA}")
    a(f"s_lshl_b32 s{t0}, s{sH}, 14\ns_add_u32 s{t0}, s{t0}, {L_W1}\nv_lshl_add_u32 v13, v{vLane}, 4, s{t0}\nv_add_u32 v{vX}, 128, v{vX}")
    for f in range(12): a(f"ds_read_b128 {R(Z0+4*f,4)}, v13 offset:{f*1024}")
    for r in range(16): qload(1, r)
    for r in range(8): a(f"v_mov_b32 v{SF+r}, 0")
    def patch(u): a(f"v_bfi_b32 v{PA+3}, s{sHi16}, v{vRC[u]}, v{PA+3}")
    a(f"s_cmp_eq_u32 s{sFirst}, 0\ns_waitcnt lgkmcnt(10)"); patch(0)
    for f in range(12,16): a(f"ds_read_b128 {R(Z0+4*f,4)}, v13 offset:{f*1024}")
    a(f"s_cbranch_scc1 {E}_noh")
    for k in range(8):
        a(f"s_waitcnt lgkmcnt({14-2*k})")
        for z in range(2): mfma(a, YY+16*z, TT+4*k, Z0+8*k+4*z, YY+16*z if k else None)
    a.label(f"{E}_noh")
    a("s_waitcnt lgkmcnt(0)")
    mfma(a, TT, ZQ, ZQ, None); mfma(a, TT+16, ZQ, ZQ, None)
    mfma(a, Z0, PA, PP, None)
    a(f"s_cbranch_scc1 {E}_noh2")
    for r in range(0,32,2): a(f"v_pk_mul_f32 {R(YY+r,2)}, {R(YY+r,2)}, {S2(sL2E)}")
    a.label(f"{E}_noh2")
    ts("pre")
    a("s_waitcnt vmcnt(17)")
    mfma(a, Z0, EA[0], WA, Z0)
    for g in range(4): mfma(a, Z0, SEL+4*g, QB[0]+4*g, Z0)
    def seg(i):
        T=TT+16*(i>>1); M=(M0,M1)[i>>1]+4*(i&1)
        mfma(a, T, M, SF+4*(i&1), T)
    def trans(op, Zs, lo, hi):
        if opt.get('NOTR'): return
        for r in range(lo, hi):
            if op == 'exp': a(f"v_exp_f32 v{EE+r}, {SG}v{Zs+r}")
            else: a(f"v_rcp_f32 v{EE+r}, v{EE+r}")
    def pkadd():
        for r in range(0,16,2): a(f"v_pk_add_f32 {R(EE+r,2)}, {R(EE+r,2)}, {S2(sOne)}")
    def pkmul(Zs):
        for r in range(0,16,2): a(f"v_pk_mul_f32 {R(EE+r,2)}, {R(EE+r,2)}, {R(Zs+r,2)}")
    def body(u):
        nu=u^1
        a(f"ds_read2st64_b32 {R(vRC[nu],2)}, v{vX} offset1:{2*AU}\nds_read_b32 v{vE}, v{vX} offset:{4*AS+128}")
        mfma(a, Z1, EA[u], WA+4, QB[u]); trans('exp', Z0, 0, 5)
        mfma(a, Z1, PA, PP+4, Z1); trans('exp', Z0, 5, 7)
        a(f"s_waitcnt lgkmcnt(0)\nds_read_b128 {R(PA,4)}, v{vRC[nu]+1} offset:{L_PA}")
        for q in range(4): a(f"ds_read_b128 {R(QB[u]+4*q,4)}, v{vIdx} offset:{(u+2)*128+q*32}")
        eaload(u, vE)
        trans('exp', Z0, 7, 10)
        seg(0); trans('exp', Z0, 10, 16)
        pkadd()
        seg(1); trans('rcp', Z0, 0, 2)
        a(f"s_waitcnt lgkmcnt(0)")
        rr=2
        for r in range(16):
            qload(u, r)
            if r in (1,3,5): trans('rcp', Z0, rr, rr+1); rr+=1
            if r == 5: seg(2)
            if r in (7,9,11,13,15): trans('rcp', Z0, rr, rr+1); rr+=1
        seg(3); trans('rcp', Z0, 10, 16)
        pkmul(Z0); patch(nu)
        for d in range(8): a(f"v_cvt_pk_bf16_f32 v{M0+d}, v{EE+2*d}, v{EE+2*d+1}")
        a(f"ds_write_b16 v{vSa}, v{ZQ}\nds_write_b16 v{vSa}, v{ZQ} offset:64")
        a(f"""v_xor_b32 v{vSa}, v{vRC[u]+1}, v{vSbase}
v_cndmask_b32 v{vR2}, v{vRC[u]}, 1.0, {S2(sLo)}
ds_write_b16 v{vSa}, v{vRC[u]} offset:64
ds_write_b16_d16_hi v{vSa}, v{vR2}""")
        mfma(a, Z0, PA, PP, None); trans('exp', Z1, 0, 2)
        a(f"ds_read_b128 {R(SF,4)}, v{vSrd[0]}\nds_read_b128 {R(SF+4,4)}, v{vSrd[1]}")
        trans('exp', Z1, 2, 5)
        a("s_waitcnt vmcnt(17)")
        mfma(a, Z0, EA[nu], WA, Z0); trans('exp', Z1, 5, 10)
        mfma(a, Z0, SEL, QB[nu], Z0); trans('exp', Z1, 10, 16)
        pkadd()
        mfma(a, Z0, SEL+4, QB[nu]+4, Z0); trans('rcp', Z1, 0, 5)
        mfma(a, Z0, SEL+8, QB[nu]+8, Z0); trans('rcp', Z1, 5, 10)
        mfma(a, Z0, SEL+12, QB[nu]+12, Z0); trans('rcp', Z1, 10, 16)
        pkmul(Z1)
        if u == 1: a(f"v_add_u32 v{vIdx}, 256, v{vIdx}")
        a(f"v_add_u32 v{vX}, 128, v{vX}")
        a(f"s_sub_u32 s{sCnt}, s{sCnt}, 1")
        for d in range(8): a(f"v_cvt_pk_bf16_f32 v{M1+d}, v{EE+2*d}, v{EE+2*d+1}")
    def flush(final):
        for q in range(4): a(f"ds_read_b128 {R(EE+4*q,4)}, v{vWX} offset:{q*32}")
        a("s_waitcnt lgkmcnt(4)")
        for i in (0,2,1,3): seg(i)
        if not final:
            a(f"v_xor_b32 v{vSrd[0]}, 0x800, v{vSrd[0]}\nv_xor_b32 v{vSrd[1]}, 0x800, v{vSrd[1]}")
            a(f"ds_read_b128 {R(SF,4)}, v{vSrd[0]}\nds_read_b128 {R(SF+4,4)}, v{vSrd[1]}")
            a(f"s_mov_b64 exec, {S2(sSwap)}")
            for k in range(8): a(f"v_mov_b32 v{PP+k}, v{F23+k}")
            a(f"""s_mov_b64 exec, -1
s_not_b64 {S2(sSwap)}, {S2(sSwap)}
s_mov_b32 s{sCnt}, s{sD1}
s_mov_b32 s{sD1}, s{sD2}
s_mov_b32 s{sD2}, s{sD3}
s_mov_b32 s{sD3}, -1
s_setprio 0""")
        for q in range(1,4): a(f"v_xor_b32 v{11+q}, {32*q}, v{vMI}")
        for d in range(16): a(f"v_cvt_pk_bf16_f32 v{TT+d}, v{TT+2*d}, v{TT+2*d+1}")
        a(f"s_mov_b64 exec, {S2(sMIm)}")
        for q in range(4): a(f"ds_write_b128 v{11+q if q else vMI}, {R(TT+4*q,4)}")
        a(f"s_mov_b64 exec, -1\ns_waitcnt lgkmcnt({4 if final else 6})")
        for q in range(4): mfma(a, Z1, EE+4*q, TT+4*q, Z1 if q else None)
        if not final:
            mfma(a, TT+16, ZQ, ZQ, None); mfma(a, TT, ZQ, ZQ, None)
            a(f"v_add_u32 v{vMI}, 1792, v{vMI}\nv_xor_b32 v{vMI}, 64, v{vMI}")
        a(f"s_mov_b64 exec, {S2(sLo)}\nds_add_f32 v{vPD}, v{Z1}\ns_mov_b64 exec, -1")
        if not final: a(f"v_add_u32 v{vPD}, 128, v{vPD}")
    ts("loop")
    a("s_nop 7\ns_nop 1\n.p2align 3")
    a.label(f"{E}_l0")
    body(0); a(f"s_cbranch_scc1 {E}_ev0")
    a.label(f"{E}_l1")
    body(1); a(f"s_cbranch_scc0 {E}_l0")
    for u in (1,0):
        a.label(f"{E}_ev{u}")
        a(f"s_cmp_eq_u32 s{sD1}, -1\ns_cbranch_scc1 {E}_tail")
        flush(False)
        a(f"s_branch {E}_l{u^1}")
    a.label(f"{E}_tail")
    ts("tail")
    W2B=PP
    a(f"v_lshlrev_b32 v14, 4, v{vLane}\ns_add_u32 s{t1}, s{sW2}, 4096")
    for f in range(8): a(f"buffer_load_dwordx4 {R(W2B+4*f,4)}, v14, {S4(sWS)}, s{sW2 if f<4 else t1} offen offset:{(f&3)*1024}")
    hreg={}
    n=0
    for r in range(16):
        if r&7 == 7: continue
        hreg[r]=Z0+n; n+=1
        a(f"buffer_load_dword v{hreg[r]}, v{vOutA if r<8 else vOutB}, {S4(sHH)}, 0 offen offset:{(r&7)*256}")
    flush(True)
    a("s_waitcnt lgkmcnt(0)\ns_barrier")
    ts("bar")
    for k in range(8): aread(k)
    W2R=[QB[0]+4*f for f in range(8)]+[W2B+4*f for f in range(8)]
    a("s_waitcnt vmcnt(14)")
    for k in range(8):
        a(f"s_waitcnt lgkmcnt({7-k})")
        for z in range(2): mfma(a, YY+16*z, TT+4*k, W2R[2*k+z], YY+16*z)
    a(f"s_cmp_lg_u32 s{sMore}, 0\ns_cbranch_scc1 {E}_more")
    a("s_waitcnt vmcnt(0)")
    a(f"s_cmp_lt_u32 s{sW}, 4\ns_cbranch_scc1 {E}_nopos\ns_cmp_eq_u32 s{sW}, 7\ns_cbranch_scc1 {E}_nopos")
    srd(a, sPOS, pOUT, 150000, 6400000)
    a(f"v_subrev_u32 v6, 256, v0\nv_lshlrev_b32 v7, 1, v6\ns_movk_i32 s{t0}, 0x5556")
    for x in range(2):
        a(f"""v_add_u32 v8, {x}, v7
v_mul_u32_u24 v9, s{t0}, v8
v_lshrrev_b32 v9, 16, v9
v_mul_u32_u24 v10, 3, v9
v_sub_u32 v8, v8, v10
v_mul_u32_u24 v10, 147, v9
v_lshrrev_b32 v10, 10, v10
v_mul_u32_u24 v11, 7, v10
v_sub_u32 v9, v9, v11
v_add_u32 v11, 5, v10
v_lshrrev_b32 v11, 4, v11
v_add_u32 v10, v10, v11
v_lshl_add_u32 v9, v10, 3, v9
v_lshl_add_u32 v9, v9, 2, v8
v_lshlrev_b32 v9, 2, v9
ds_read_b32 v{12+2*x}, v9 offset:{L_PD+4}
ds_read_b32 v{13+2*x}, v9 offset:{L_POSD}""")
    a(f"""s_mul_i32 s{t1}, s{sB}, 588
v_lshl_add_u32 v7, v6, 2, s{t1}
v_cmp_gt_u32 vcc, 147, v6
s_mov_b32 s{t0}, {LN2}
s_waitcnt lgkmcnt(0)
v_fma_f32 v12, v12, s{t0}, v13
v_fma_f32 v14, v14, s{t0}, v15
v_cvt_pk_bf16_f32 v12, v12, v14
s_mov_b64 exec, vcc
buffer_store_dword v12, v7, {S4(sPOS)}, 0 offen
s_mov_b64 exec, -1""")
    a.label(f"{E}_nopos")
    X=QB[0]; HU=TT
    valid=[r for r in range(16) if r&7 != 7]
    for z in range(2):
        for r in valid: a(f"v_exp_f32 v{X+16*z+r}, {SG}v{YY+16*z+r}")
    for z in range(2):
        for r in range(0,16,2): a(f"v_pk_fma_f32 {R(X+16*z+r,2)}, {R(X+16*z+r,2)}, {S2(sL2E)}, {S2(sL2E)}")
    for z in range(2):
        for r in valid: a(f"v_rcp_f32 v{X+16*z+r}, v{X+16*z+r}")
    for r in valid:
        a(f"v_lshlrev_b32 v{HU+r}, 16, v{hreg[r]}\nv_and_b32 v{HU+16+r}, s{sHi16}, v{hreg[r]}")
    for r in range(0,16,2):
        for z in range(2): a(f"v_pk_fma_f32 {R(X+16*z+r,2)}, {R(X+16*z+r,2)}, {R(YY+16*z+r,2)}, {R(HU+16*z+r,2)}")
        for rr in (r,r+1):
            if rr in valid:
                a(f"v_cvt_pk_bf16_f32 v{X+rr}, v{X+rr}, v{X+16+rr}")
                a(f"buffer_store_dword v{X+rr}, v{vOutA if rr<8 else vOutB}, {S4(sOUT)}, 0 offen offset:{(rr&7)*256} {ST}")
    ts("st"); ts.dump()
    a("s_endpgm")
    a.label(f"{E}_retry")
    a(f"s_lshr_b32 s{sCap}, s{sCap}, 2\ns_branch {E}_again")
    a.label(f"{E}_more")
    a(f"s_mov_b32 s{sFirst}, 0\ns_add_u32 s{sWin}, s{sWin}, s{sN}")
    a.label(f"{E}_again")
    if SAFE: a(f"s_add_u32 s93, s93, 1\ns_cmp_gt_u32 s93, 3000\ns_cbranch_scc1 {E}_end")
    a("s_waitcnt vmcnt(0) lgkmcnt(0)\ns_barrier")
    tabaddr()
    a(f"buffer_load_dword v9, v7, {S4(sWS)}, s{sTabO} offen\ns_branch {E}_round")
    for f in outl: f()
    a.label(f"{E}_end")
    a("s_endpgm")
    gen_k2.names=ts.names
    return a.lines, 256, K2_LDS
```

```python
import sys, os, argparse
sys.path.insert(0, os.path.dirname(os.path.abspath(__file__)))
from asmlib import *
import asmcheck, asmalign
NAME='gather_scatter__cheap_equivariant_egnn__graph'
ap=argparse.ArgumentParser()
ap.add_argument('-o', default=f'cdna_kernels/{NAME}.s')
ap.add_argument('--only1', action='store_true')
ap.add_argument('-v', action='store_true')
ap.add_argument('-D', action='append', default=[])
args=ap.parse_args()
opt=dict((x.split('=')+['1'])[:2] for x in args.D)
ref=open(f'cdna_kernels/{NAME}.s.ref').read().split('\n')
head=[l for l in ref[:ref.index([x for x in ref if x.startswith('; @launch')][0])]]
ks=[]
if opt.get('V1'):
    from gen_k1 import gen_k1
    from gen_k2 import gen_k2
else:
    from gen_k1b import gen_k1
    from gen_k2c import gen_k2
l,nv,lds=gen_k1('egnn_sort_kernel', ST=opt.get('ST1',''), opt=opt)
ks.append(('egnn_sort_kernel',l,nv,lds,256))
if not args.only1:
    l,nv,lds=gen_k2(NAME+'_kernel', opt)
    ks.append((NAME+'_kernel',l,nv,lds,256))
out=list(head)
if opt.get('TS'): out.append('; TS '+','.join(gen_k1.names)+' | '+','.join(gen_k2.names))
body=[]; desc=[]
for n,l,nv,lds,g in ks:
    out.append(f"; @launch kernel={n} grid=({g},1,1) block=(512,1,1) lds={lds}")
    log=[]
    l2,tot=asmcheck.fix_hazards(l,log)
    if args.v:
        for x in log: print(n[:10],x)
    if opt.get('AL') and 'sort' not in n:
        lg=[]
        l2,npr,nn=asmalign.align(l2,'L_k2_l0','L_k2_tail' if opt['AL']=='1' else None, nop=True, log=lg)
        print('align: promoted',npr,'nops',nn, lg if args.v else '')
    errs=asmcheck.check_waits(l2)
    for e in errs: print("WAITERR",n[:10],e)
    print(n,"instrs",len(l2),"nop states",tot,"vgpr",nv,"lds",lds)
    body.append(kernel_header(n)+"\n"+"\n".join(l2)+"\n"); desc.append(kernel_desc(n,nv))
open(args.o,'w').write("\n".join(out)+'\n.amdgcn_target "amdgcn-amd-amdhsa--gfx950"\n'+"".join(body)+"".join(desc))
```

```python
from asmlib import *
OFF_Q=0; OFF_EAP=0x800000; OFF_REC=0x1500000; OFF_TAB=0x1A00000; OFF_WF=0x1A80000
WF_WD=0; WF_W1=32768; WF_W2=65536; WF_WA=98304; WF_WDI=102400; WF_WX=103424
WS_USED=OFF_WF+0x20000
import os
NEG=int(os.environ.get('NEG','1'))
LOG2E='0xbfb8aa3b' if NEG else '0x3fb8aa3b'
LN2='0xbf317218' if NEG else '0x3f317218'
SG='' if NEG else '-'
BIG='0x40000000'
DBIAS=2048
assert all((d*42800)>>22 == d//98 for d in range(25088))
assert all((n*147)>>10 == n//7 for n in range(98))

def srd(a, d, b, n, off=0):
    if off:
        a(f"s_add_u32 s{d}, s{b}, {off}\ns_addc_u32 s{d+1}, s{b+1}, 0")
    else:
        a(f"s_mov_b32 s{d}, s{b}\ns_mov_b32 s{d+1}, s{b+1}")
    a(f"s_mov_b32 s{d+2}, {n}\ns_mov_b32 s{d+3}, 0x20000")

def wave_scan(a, v):
    for sh in (1,2,4,8):
        a(f"v_add_u32_dpp v{v}, v{v}, v{v} row_shr:{sh} row_mask:0xf bank_mask:0xf bound_ctrl:1")
    a(f"v_add_u32_dpp v{v}, v{v}, v{v} row_bcast:15 row_mask:0xa bank_mask:0xf")
    a(f"v_add_u32_dpp v{v}, v{v}, v{v} row_bcast:31 row_mask:0xc bank_mask:0xf")

def gen_k1(name, ST="", opt={}):
    DM = opt.get('DM')
    L_REC=0; L_CNT=19200; L_START=20224; L_INV=21248; L_H=24576; L_W=L_H+25600+0; L_W=(L_W+1023)//1024*1024; L_EA=L_W+32768
    K1_LDS = L_EA if DM else L_EA+51200
    a = Asm(); ts=TS(a, opt.get("TS"), list(range(68,100,2)), 0, 24, 3, 2, 32, 4)
    E=f"L_{name}"
    a(f"s_cmp_ge_u32 s2, 254\ns_cbranch_scc1 {E}_end")
    ts("start")
    a("s_load_dwordx16 s[8:23], s[0:1], 0\ns_load_dwordx2 s[24:25], s[0:1], 80")
    a("v_lshrrev_b32 v1, 6, v0\nv_and_b32 v2, 63, v0\nv_readfirstlane_b32 s3, v1")
    a(f"""s_mul_i32 s4, s2, 6400
v_lshl_add_u32 v3, v0, 4, s4
v_mov_b32 v5, {BIG}
v_cmp_gt_u32 s[26:27], 400, v0""".replace("v_cmp_gt_u32 s[26:27], 400, v0","v_cmp_gt_u32 vcc, 400, v0\ns_mov_b64 s[26:27], vcc"))
    a(f"""v_cndmask_b32 v3, v5, v3, vcc
v_lshlrev_b32 v22, 2, v0
v_mov_b32 v24, 0
ds_write_b32 v22, v24 offset:{L_CNT}
s_mov_b32 s34, 1600000
s_mov_b32 s35, 0x20000
s_mov_b32 s38, 1600000
s_mov_b32 s39, 0x20000
s_cmp_ge_u32 s2, 250
s_waitcnt lgkmcnt(0)
s_cbranch_scc1 {E}_prep
s_mov_b32 s32, s16
s_mov_b32 s33, s17
s_mov_b32 s36, s14
s_mov_b32 s37, s15
buffer_load_dwordx4 v[8:11], v3, s[32:35], 0 offen
buffer_load_dwordx4 v[12:15], v3, s[36:39], 0 offen
s_barrier""")
    srd(a, 28, 24, WS_USED)
    srd(a, 40, 10, 150000)
    srd(a, 44, 8, 6400000)
    srd(a, 48, 18, 32768, 128*256)
    if not DM: srd(a, 52, 12, 12800000)
    a(f"""v_lshrrev_b32 v17, 4, v2
s_and_b32 s5, s3, 3
s_lshl_b32 s5, s5, 2
v_add_u32 v18, s5, v17
v_and_b32 v19, 15, v2
v_xor_b32 v18, v18, v19
v_lshlrev_b32 v18, 4, v18
v_lshl_add_u32 v18, v17, 8, v18
s_mul_i32 s6, s2, 25600
s_lshl_b32 s7, s3, 10
s_add_u32 s6, s6, s7
s_cmp_lg_u32 s3, 0
s_cbranch_scc1 {E}_nohx
s_add_u32 s56, s6, {24*1024}
s_mov_b32 m0, {L_H+24*1024}
s_nop 0
buffer_load_dwordx4 v18, s[44:47], s56 offen lds""")
    a.label(f"{E}_nohx")
    for m in range(3):
        a(f"s_add_u32 m0, s7, {L_H+m*8192}\ns_add_u32 s56, s6, {m*8192}\nbuffer_load_dwordx4 v18, s[44:47], s56 offen lds")
    a(f"""v_lshlrev_b32 v20, 2, v17
v_xor_b32 v20, v20, v19
v_lshlrev_b32 v20, 4, v20
v_lshl_add_u32 v20, v17, 8, v20""")
    def wdma():
        for m in range(4):
            a(f"s_add_u32 m0, s7, {L_W+m*8192}\ns_add_u32 s56, s7, {m*8192}\nbuffer_load_dwordx4 v20, s[48:51], s56 offen lds")
    a(f"""s_lshr_b32 s59, s3, 1
s_and_b32 s60, s3, 1
v_and_b32 v48, 31, v2
v_lshrrev_b32 v49, 5, v2
v_xor_b32 v50, v49, v19
v_lshlrev_b32 v50, 4, v50
v_lshl_add_u32 v50, v48, 8, v50
s_lshl_b32 s56, s59, 13
s_add_u32 s56, s56, {L_H}
v_add_u32 v50, s56, v50""")
    a(f"""v_bfe_u32 v51, v2, 2, 2
v_lshl_add_u32 v52, v49, 3, v51
v_lshlrev_b32 v52, 8, v52
v_and_b32 v53, 1, v17
v_lshlrev_b32 v53, 1, v53
v_bfe_u32 v54, v2, 1, 1
v_add_u32 v53, v53, v54
v_lshl_add_u32 v52, v53, 4, v52
v_and_b32 v54, 1, v2
v_lshl_add_u32 v52, v54, 3, v52
v_add_u32 v52, {L_W}, v52
s_lshl_b32 s56, s60, 1
v_xor_b32 v53, s56, v51
v_xor_b32 v54, 1, v53
v_lshl_add_u32 v53, v53, 6, v52
v_lshl_add_u32 v54, v54, 6, v52""")
    a(f"""s_mul_i32 s56, s2, 25600
s_lshl_b32 s57, s59, 13
s_add_u32 s56, s56, s57
s_lshl_b32 s57, s60, 7
s_add_u32 s56, s56, s57
v_lshlrev_b32 v56, 2, v48
v_lshl_add_u32 v56, v49, 10, v56
v_add_u32 v56, s56, v56
v_lshlrev_b32 v21, 4, v2
v_lshlrev_b32 v44, 4, v0
v_mov_b32 v25, 1
s_mov_b32 s58, 42800
s_mov_b32 s62, {LOG2E}
s_mov_b32 s63, {LOG2E}
s_mov_b32 s64, 0x7fff0000
s_movk_i32 s65, 4096
s_mov_b32 s66, 0xffff""")
    if not DM: a("s_mul_i32 s57, s2, 51200\ns_add_u32 s57, s57, s7")
    ts("issued")
    PB=192; SH=200
    def eadma(m):
        a(f"s_add_u32 m0, s7, {L_EA+m*8192}\ns_add_u32 s56, s57, {m*8192}\nbuffer_load_dwordx4 v21, s[52:55], s56 offen lds")
    G=[int(x) for x in opt.get('G','0011')]
    def gat(pos):
        for i in range(4):
            if G[i]==pos: a(f"buffer_load_dwordx2 v[{PB+2*i}:{PB+2*i+1}], v{PB+2*i}, s[40:43], 0 offen")
    def ng(pos): return sum(1 for g in G if g<=pos)
    a("s_waitcnt vmcnt(4)")
    ts("dst")
    for i in range(4):
        d=8+i; b=26+i
        a(f"v_mul_u32_u24 v{b}, s58, v{d}\nv_lshrrev_b32 v{b}, 22, v{b}\nv_lshlrev_b32 v{36+i}, 2, v{b}")
    a("s_mov_b64 exec, s[26:27]")
    for i in range(4): a(f"ds_add_rtn_u32 v{40+i}, v{36+i}, v25 offset:{L_CNT}")
    a("s_mov_b64 exec, -1")
    wdma()
    a("s_waitcnt vmcnt(7)")
    for i in range(4):
        a(f"v_mul_u32_u24 v{PB+2*i}, 6, v{12+i}\nv_and_b32 v{PB+2*i}, -4, v{PB+2*i}")
    assert DM
    NEA=0
    if not DM:
        for m in range(6): eadma(m)
        a(f"s_cmp_ge_u32 s3, 2\ns_cbranch_scc1 {E}_noex"); eadma(6); a.label(f"{E}_noex")
        NEA=6
    def meta(a):
        for i in range(4):
            d=8+i; s=12+i; b=26+i; x=204+2*(i&1); y=x+1
            a(f"""v_mul_u32_u24 v{x}, 98, v{b}
v_sub_u32 v{d}, v{d}, v{x}
v_mul_u32_u24 v{x}, 147, v{d}
v_lshrrev_b32 v{x}, 10, v{x}
v_mul_u32_u24 v{y}, 7, v{x}
v_sub_u32 v{d}, v{d}, v{y}
v_add_u32 v{y}, 5, v{x}
v_lshrrev_b32 v{y}, 4, v{y}
v_add_u32 v{x}, v{x}, v{y}
v_lshl_add_u32 v{x}, v{x}, 3, v{d}
v_and_b32 v{SH+i}, 1, v{s}
v_lshl_or_b32 v{s}, v{x}, 24, v{s}
v_and_b32 v{d}, 3, v{d}
v_lshl_or_b32 v{s}, v{d}, 20, v{s}
v_lshlrev_b32 v{SH+i}, 4, v{SH+i}""")
    M=cap(meta)
    npre=int(opt.get('MP','15'))
    for l in M[:npre]: a(l)
    M=M[npre:]
    a("s_waitcnt lgkmcnt(0)\ns_barrier")
    ts("cnt")
    a(f"ds_read_b128 v[32:35], v21 offset:{L_CNT}")
    gat(0)
    for l in M[:15]: a(l)
    M=M[15:]
    a(f"""s_waitcnt lgkmcnt(0)
v_add_u32 v6, v32, v33
v_add_u32 v7, v6, v34
v_add_u32 v31, v7, v35
v_mov_b32 v30, v31""")
    M=ilv(a, [M.pop(0)]+cap(lambda t: wave_scan(t,31)), M, [0,2,2,2,2,2,0])
    a(f"""v_sub_u32 v60, v31, v30
v_add_u32 v61, v60, v32
v_add_u32 v62, v60, v6
v_add_u32 v63, v60, v7
ds_write_b128 v21, v[60:63] offset:{L_START}""")
    for i in range(4): a(f"ds_read_b32 v{56+i+1 if False else 208+i}, v{36+i} offset:{L_START}")
    for l in M: a(l)
    a(f"v_lshlrev_b32 v45, 7, v0\nv_add_u32 v46, {DBIAS}, v22\ns_waitcnt lgkmcnt(0)\ns_mov_b64 exec, s[26:27]")
    for i in range(4):
        a(f"""v_add_u32 v{40+i}, v{40+i}, v{208+i}
v_mul_u32_u24 v{36+i}, 12, v{40+i}
ds_write_b32 v{36+i}, v{12+i} offset:{L_REC}""")
        if DM:
            a(f"v_sub_u32 v{40+i}, v46, v{40+i}\nv_add_lshl_u32 v{40+i}, v{40+i}, {i}, 16")
        else:
            a(f"v_lshlrev_b32 v30, 1, v{40+i}\nv_add_u32 v31, {32*i}, v45\nds_write_b16 v30, v31 offset:{L_INV}")
    a("s_mov_b64 exec, -1")
    gat(1)
    a(f"s_waitcnt vmcnt({ng(1)}) lgkmcnt(0)\ns_barrier")
    ts("hW")
    a(f"s_cmp_lg_u32 s3, 7\ns_cbranch_scc1 {E}_notab")
    for i in range(4): a(f"v_lshl_or_b32 v{32+i}, v{32+i}, 16, v{60+i}")
    a(f"""v_lshrrev_b32 v30, 1, v2
s_movk_i32 s56, 8000
v_mul_u32_u24 v30, s56, v30
v_and_b32 v31, 1, v2
v_lshl_add_u32 v30, v31, 4, v30
s_lshl_b32 s56, s2, 5
s_add_u32 s56, s56, {OFF_TAB}
buffer_store_dwordx4 v[32:35], v30, s[28:31], s56 offen {ST}""")
    a.label(f"{E}_notab")
    gat(2)
    if not DM:
        a(f"v_lshrrev_b32 v46, 1, v0\nv_lshlrev_b32 v46, 1, v46")
        for i in range(7): a(f"ds_read_u16 v{204+i}, v46 offset:{L_INV+i*512}")
    for k in range(8):
        if k == 0: a(f"ds_read_b128 v[64:67], v50")
        else: a(f"v_xor_b32 v55, {32*k}, v50\nds_read_b128 v[{64+4*k}:{67+4*k}], v55")
        for z in range(2):
            for u in range(2):
                r = 96+8*k+4*z+2*u
                a(f"ds_read_b64_tr_b16 v[{r}:{r+1}], v{53+z} offset:{k*4096+u*1024}")
        if k >= 2:
            kk = k-2
            a("s_waitcnt lgkmcnt(10)")
            for z in range(2):
                D = 160+16*z; C = f"v[{D}:{D+15}]" if kk else "0"
                a(f"v_mfma_f32_32x32x16_bf16 v[{D}:{D+15}], v[{64+4*kk}:{67+4*kk}], v[{96+8*kk+4*z}:{99+8*kk+4*z}], {C}")
    for kk in (6,7):
        a(f"s_waitcnt lgkmcnt({5 if kk==6 else 0})")
        for z in range(2):
            D = 160+16*z
            a(f"v_mfma_f32_32x32x16_bf16 v[{D}:{D+15}], v[{64+4*kk}:{67+4*kk}], v[{96+8*kk+4*z}:{99+8*kk+4*z}], v[{D}:{D+15}]")
    ts("gemm")
    gat(3)
    a(f"""s_add_u32 s56, s2, 1
s_mul_i32 s56, s56, 25600
s_mov_b32 s32, s24
s_mov_b32 s33, s25
s_mov_b32 s34, s56
s_mov_b32 s35, 0x20000""")
    if not DM:
        a(f"v_and_b32 v55, 1, v0\nv_lshlrev_b32 v55, 4, v55\nv_add_u32 v55, {L_EA}, v55")
        for i in range(7): a(f"v_add_u32 v{204+i}, v{204+i}, v55")
    for r in range(0,16,2):
        a(f"v_pk_mul_f32 v[{160+r}:{161+r}], v[{160+r}:{161+r}], s[62:63]\nv_pk_mul_f32 v[{176+r}:{177+r}], v[{176+r}:{177+r}], s[62:63]")
    for r in range(16):
        lo=160+r; hi=176+r
        a(f"""v_cvt_pk_bf16_f32 v{lo}, v{lo}, v{hi}
v_and_b32 v{hi}, 0x7fffffff, v{hi}
v_add_u32 v{hi}, 0x8000, v{hi}
v_sub_u32_sdwa v{hi}, v{hi}, v{lo} clamp dst_sel:DWORD dst_unused:UNUSED_PAD src0_sel:DWORD src1_sel:WORD_0
v_bfi_b32 v{lo}, s64, v{hi}, v{lo}""")
        q = r>>2
        a(f"buffer_store_dword v{lo}, v56, s[32:35], {'s65' if q>>1 else '0'} offen offset:{(r&3)*256+(q&1)*2048} {ST}")
    ts("qst")
    a(f"s_waitcnt vmcnt({16+NEA})\ns_mov_b64 exec, s[26:27]")
    for i in range(4):
        lo=PB+2*i; hi=lo+1
        a(f"v_alignbit_b32 v{lo}, v{hi}, v{lo}, v{SH+i}\nv_lshrrev_b32 v{hi}, v{SH+i}, v{hi}")
        if DM: a(f"v_and_or_b32 v{hi}, v{hi}, s66, v{40+i}")
        else: a(f"v_and_b32 v{hi}, s66, v{hi}")
        a(f"ds_write2_b32 v{36+i}, v{lo}, v{hi} offset0:1 offset1:2")
    a("s_mov_b64 exec, -1")
    a(f"s_mul_i32 s56, s2, 19200\ns_add_u32 s56, s56, {OFF_REC}\nv_cmp_gt_u32 vcc, 176, v0\nv_add_u32 v45, 16384, v44\nv_cndmask_b32 v45, v5, v45, vcc\ns_add_u32 s57, s56, 8192")
    if DM: a("s_waitcnt lgkmcnt(0)\ns_barrier")
    else: a("s_waitcnt vmcnt(16) lgkmcnt(0)\ns_barrier")
    ts("rec")
    for i in range(3): a(f"ds_read_b128 v[{8+4*i}:{11+4*i}], v44 offset:{L_REC+i*8192}")
    if not DM:
        for i in range(6): a(f"ds_read_b128 v[{64+4*i}:{67+4*i}], v{204+i}")
    n=0 if DM else 6
    a(f"s_waitcnt lgkmcnt({n+2})\nbuffer_store_dwordx4 v[8:11], v44, s[28:31], s56 offen {ST}")
    a(f"s_waitcnt lgkmcnt({n+1})\nbuffer_store_dwordx4 v[12:15], v44, s[28:31], s57 offen {ST}")
    a(f"s_waitcnt lgkmcnt({n})\nbuffer_store_dwordx4 v[16:19], v45, s[28:31], s56 offen {ST}")
    if not DM:
        a(f"s_mul_i32 s56, s2, 51200\ns_add_u32 s56, s56, {OFF_EAP}")
        for i in range(6):
            a(f"s_add_u32 s57, s56, {i*8192}\ns_waitcnt lgkmcnt({5-i})\nbuffer_store_dwordx4 v[{64+4*i}:{67+4*i}], v44, s[28:31], s57 offen {ST}")
        a(f"s_cmp_ge_u32 s3, 2\ns_cbranch_scc1 {E}_noe7")
        a(f"ds_read_b128 v[88:91], v210\ns_add_u32 s57, s56, {6*8192}\ns_waitcnt lgkmcnt(0)\nbuffer_store_dwordx4 v[88:91], v44, s[28:31], s57 offen {ST}")
        a.label(f"{E}_noe7")
    if opt.get('DLY1'):
        a(f"s_movk_i32 s90, {opt['DLY1']}"); a.label("L_k1_dly")
        for i in range(16): a("v_exp_f32 v200, v200")
        a("s_sub_u32 s90, s90, 1\ns_cbranch_scc0 L_k1_dly")
    ts("east"); ts.dump()
    a("s_endpgm")
    a.label(f"{E}_prep")
    srd(a, 28, 24, WS_USED)
    a(f"""v_and_b32 v48, 31, v2
v_lshrrev_b32 v49, 5, v2
v_lshlrev_b32 v21, 4, v2
s_cmp_eq_u32 s2, 253
s_cbranch_scc1 {E}_small""")
    a("""s_barrier
s_cmp_eq_u32 s2, 250
s_cselect_b32 s32, s18, s22
s_cselect_b32 s33, s19, s23
s_mov_b32 s34, 65536
s_mov_b32 s35, 0x20000
s_cmp_eq_u32 s2, 252
s_cselect_b32 s4, 32768, 0
s_lshl_b32 s5, s3, 12
s_add_u32 s4, s4, s5
s_mov_b32 m0, s5
s_nop 0""")
    for m in range(4): a(f"buffer_load_dwordx4 v21, s[32:35], s4 offen offset:{m*1024} lds")
    a(f"""s_and_b32 s6, s3, 3
s_lshl_b32 s6, s6, 13
s_lshr_b32 s7, s3, 2
s_lshl_b32 s7, s7, 7
s_add_u32 s6, s6, s7
s_cmp_eq_u32 s2, 250
s_cselect_b32 s56, 1, 2
s_cselect_b32 s57, 64, 2
s_cmp_eq_u32 s2, 252
s_cselect_b32 s58, 10, 11
v_lshlrev_b32 v50, s56, v48
v_lshlrev_b32 v51, s58, v49
v_add3_u32 v50, v50, v51, s6
v_add_u32 v51, s57, v50
s_sub_u32 s59, s2, 250
s_lshl_b32 s59, s59, 15
s_add_u32 s59, s59, s5
s_add_u32 s59, s59, {OFF_WF}
s_mov_b32 s60, 0x05040100
s_waitcnt vmcnt(0)
s_barrier
s_cmp_eq_u32 s2, 252
s_cbranch_scc1 {E}_w2""")
    def frags(w2):
        for m in range(4):
            for e in range(8):
                eo = ((e&3)+8*(e>>2)) if w2 else e
                a(f"ds_read_u16 v{64+8*m+e}, v{50+(m&1)} offset:{((m>>1)*16+eo)*256}")
            a("s_waitcnt lgkmcnt(0)")
            for d in range(4): a(f"v_perm_b32 v{64+8*m+d}, v{64+8*m+2*d+1}, v{64+8*m+2*d}, s60")
    frags(False)
    for m in range(4): a(f"buffer_store_dwordx4 v[{64+8*m}:{67+8*m}], v21, s[28:31], s59 offen offset:{m*1024}")
    a("s_endpgm")
    a.label(f"{E}_w2")
    frags(True)
    a(f"""s_and_b32 s4, s3, 1
s_bitcmp1_b32 s3, 1
s_cbranch_scc1 {E}_w2b
s_lshl_b32 s4, s4, 13
s_add_u32 s4, s4, s7
s_add_u32 s4, s4, {OFF_WF+WF_W2}
s_add_u32 s6, s4, 4096
v_lshlrev_b32 v22, 2, v48
v_lshl_add_u32 v22, v49, 10, v22""")
    for m in range(4):
        for d in range(4): a(f"buffer_store_dword v{64+8*m+d}, v22, s[28:31], {'s6' if m>>1 else 's4'} offen offset:{(m&1)*2048+d*256}")
    a("s_endpgm")
    a.label(f"{E}_w2b")
    a(f"s_lshl_b32 s4, s4, 12\ns_lshl_b32 s7, s7, 6\ns_add_u32 s4, s4, s7\ns_add_u32 s4, s4, {OFF_WF+WF_W2+16384}")
    for m in range(4): a(f"buffer_store_dwordx4 v[{64+8*m}:{67+8*m}], v21, s[28:31], s4 offen offset:{m*1024}")
    a("s_endpgm")
    a.label(f"{E}_small")
    srd(a, 32, 18, 17*256, 256*256)
    srd(a, 36, 20, 256)
    a(f"""s_and_b32 s4, s3, 3
s_lshl_b32 s5, s4, 6
v_lshl_add_u32 v50, v48, 1, s5
s_mov_b32 s62, {LOG2E}
s_cmp_ge_u32 s3, 4
s_cbranch_scc1 {E}_wdi
v_lshl_add_u32 v51, v49, 11, v50""")
    for e in range(8): a(f"buffer_load_ushort v{64+e}, v51, s[32:35], 0 offen offset:{256+e*256}")
    a("""v_and_b32 v52, 0x38, v2
v_lshlrev_b32 v52, 2, v52
v_bfe_u32 v53, v2, 1, 1
v_lshl_add_u32 v52, v53, 4, v52
v_bfe_u32 v53, v2, 2, 1
v_lshl_add_u32 v52, v53, 3, v52
v_and_b32 v53, 1, v2
v_lshl_add_u32 v52, v53, 2, v52
buffer_load_dword v72, v52, s[36:39], 0 offen
s_waitcnt vmcnt(0)""")
    for e in range(8): a(f"v_lshlrev_b32 v{64+e}, 16, v{64+e}\nv_mul_f32 v{64+e}, s62, v{64+e}")
    for d in range(4): a(f"v_cvt_pk_bf16_f32 v{64+d}, v{64+2*d}, v{65+2*d}")
    a(f"""s_lshl_b32 s5, s4, 10
s_add_u32 s5, s5, {OFF_WF+WF_WA}
buffer_store_dwordx4 v[64:67], v21, s[28:31], s5 offen
v_lshlrev_b32 v22, 2, v2
s_mov_b32 s5, {OFF_WF+WF_WX}
buffer_store_dword v72, v22, s[28:31], s5 offen
s_endpgm""")
    a.label(f"{E}_wdi")
    a(f"""buffer_load_ushort v64, v50, s[32:35], 0 offen
v_cmp_gt_u32 vcc, 32, v2
v_lshlrev_b32 v22, 2, v2
s_lshl_b32 s5, s4, 8
s_add_u32 s5, s5, {OFF_WF+WF_WDI}
s_waitcnt vmcnt(0)
v_lshlrev_b32 v64, 16, v64
v_mul_f32 v64, s62, v64
v_cvt_pk_bf16_f32 v64, 0, v64
v_cndmask_b32 v64, 0, v64, vcc
buffer_store_dword v64, v22, s[28:31], s5 offen""")
    a.label(f"{E}_end")
    a("s_endpgm")
    gen_k1.names=ts.names
    return a.lines, 212, K1_LDS
```

```python
from asmlib import *
from gen_k1b import *
NTILE=69; CAP=320; RPS=1296; AS=8960; AU=AS//256
TB=(0,19,38,53); TCAP=(544,544,416,448)
L_S=0; L_PA=32768; L_POSD=36864; L_PD=38912; L_CNT=40960; L_WX=41216; L_IDX=41472
L_RP=L_IDX; L_WD=L_RP+8*RPS; L_W1=L_IDX+7*AS; L_MI=L_W1+32768; K2_LDS=L_MI+98*256
assert L_WD+32768 <= L_W1 and K2_LDS <= 163840 and L_RP+8*RPS < 65536 and L_MI%256==0 and NTILE*128<=AS
vT=192; vMin=193; vTB=194; vCap=195; vBP=196; vL31=197; vC0p=198; vC1p=199; vM31=248; vBig=249; vFk=250
rC0=16; rC1=24; rE1=32; rST=40
def hkey(row):
    g=row//7; n=row-7*g; gi=g+(g>=11); return (n&3)|((gi&1)<<2)|((n>>2)<<3)
W2ROW0=(OFF_WF+WF_W2)//256
QB=(16,32); Z0=48; Z1=64; EE=80; M0=96; M1=104; SF=112; TT=120; WA=152; PP=160; F23=168; SEL=176; EA=(192,248); PA=196; YY=200; ZQ=252
vIdx=232; vX=233; vRC=(234,236); vE=238; vSa=239; vSbase=240; vSrd=(241,242); vR2=243; vMI=245; vPD=246; vWX=247
vL4=1; vLane=2; vA=3; vOutA=4; vOutB=5
REC=80; POSR=100; RANK=6; CA=11
def R(b,n): return f"v[{b}:{b+n-1}]"
def S2(b): return f"s[{b}:{b+1}]"
def S4(b): return f"s[{b}:{b+3}]"
def mfma(a,D,A,B,C): a(f"v_mfma_f32_32x32x16_bf16 {R(D,16)}, {R(A,4)}, {R(B,4)}, {R(C,16) if C is not None else 0}")
sW=3; sQ=4; sWS=16; sHH=20; sEA=24; pOUT=28; pWS=32; sTabO=34; sMore=35; sOUT=36; sPOS=40
sB=44; sH=45; sTeam=46; sRow0=47; sWin=48; sCap=49; sFirst=50; sN=51; sRPb=52; sCnt=53; sD1=54; sD2=55; sD3=56; sNT=57
sSwap=58; sLo=60; sMIm=62; sL2E=64; sOne=66; sHi16=68; sKlo=69; sKhi=70; sW2=71; sV=72
t0=82; t1=83; t2=84; t3=85; tp=86; u0=88; u1=89; u2=90; sBias=91; sTBb=92

def gen_k2(name, opt):
    a = Asm(); ts=TS(a, opt.get("TS"), [94,96,98,100,8,10,12,14,72,74,76,78,80], 1, pWS, sW, vLane, sPOS, 6); E="L_k2"
    if opt.get('TSN'): ts.only=opt['TSN'].split(',')
    SAFE=opt.get('SAFE'); ST=opt.get('ST2',''); DM=opt.get('DM')
    outl=[]
    a(f"s_cmp_ge_u32 s2, 256\ns_cbranch_scc1 {E}_end")
    ts("start")
    a(f"s_load_dwordx2 {S2(pWS)}, s[0:1], 80\ns_load_dwordx8 s[8:15], s[0:1], 0\ns_load_dwordx4 {S4(pOUT)}, s[0:1], 64")
    def tabaddr():
        a(f"""v_lshrrev_b32 v6, 1, v0
v_mov_b32 v15, {BIG}
v_cmp_gt_u32 vcc, 250, v6
v_lshlrev_b32 v7, 5, v6
v_cndmask_b32 v7, v15, v7, vcc""")
    a(f"""v_lshrrev_b32 v1, 6, v0
v_and_b32 v{vLane}, 63, v0
v_readfirstlane_b32 s{sW}, v1
s_and_b32 s{sB}, s2, 7
s_lshl_b32 s{sB}, s{sB}, 5
s_lshr_b32 s{t0}, s2, 3
s_add_u32 s{sB}, s{sB}, s{t0}
s_lshr_b32 s{t0}, s{sB}, 3
s_mul_i32 s{t0}, s{t0}, 8000
s_and_b32 s{t1}, s{sB}, 7
s_lshl_b32 s{t1}, s{t1}, 2
s_add_u32 s{t0}, s{t0}, s{t1}
s_add_u32 s{sTabO}, s{t0}, {OFF_TAB}
s_mov_b32 s{sWS+2}, {WS_USED}
s_mov_b32 s{sWS+3}, 0x20000""")
    tabaddr()
    a(f"""v_lshlrev_b32 v8, 2, v0
v_mov_b32 v10, 0
ds_write_b32 v8, v10 offset:{L_PD}
s_waitcnt lgkmcnt(0)
s_mov_b32 s{sWS}, s{pWS}
s_mov_b32 s{sWS+1}, s{pWS+1}
buffer_load_dword v9, v7, {S4(sWS)}, s{sTabO} offen""")
    srd(a, sHH, 8, 6400000)
    srd(a, sPOS, 10, 150000)
    srd(a, sEA, 12, 12800000)
    srd(a, sOUT, pOUT, 6400000)
    a(f"""s_and_b32 s{sH}, s{sW}, 1
s_lshr_b32 s{sTeam}, s{sW}, 1
s_mul_i32 s{sRow0}, s{sTeam}, 28
s_min_u32 s{sRow0}, s{sRow0}, 77
s_mov_b32 s{sWin}, 0
s_movk_i32 s{sCap}, {CAP}
s_mov_b32 s{sFirst}, 1
s_mov_b32 s{sLo}, -1
s_mov_b32 s{sLo+1}, 0
s_mov_b32 s{sMIm}, 0x01111111
s_mov_b32 s{sMIm+1}, 0x01111111
s_mov_b32 s{sHi16}, 0xffff0000
s_mov_b32 s{sL2E}, {LOG2E}
s_mov_b32 s{sL2E+1}, {LOG2E}
s_mov_b32 s{sOne}, 1.0
s_mov_b32 s{sOne+1}, 1.0
s_mov_b32 s{sKlo}, 0xbf80
s_mov_b32 s{sKhi}, 0xbf800000
s_mul_i32 s{sRPb}, s{sW}, {RPS}
s_lshl_b32 s{t0}, s{sH}, 7
s_add_u32 s{sQ}, s{pWS}, s{t0}
s_addc_u32 s{sQ+1}, s{pWS+1}, 0
s_and_b32 s{sQ+1}, s{sQ+1}, 0xffff
s_or_b32 s{sQ+1}, s{sQ+1}, 0x80000000
s_mov_b32 s{sQ+2}, 6400000
s_mov_b32 s{sQ+3}, 0xC00000
s_lshl_b32 s{sW2}, s{sH}, 13
s_add_u32 s{sW2}, s{sW2}, {OFF_WF+WF_W2+16384}""")
    if SAFE: a("s_mov_b32 s93, 0")
    a(f"s_cmp_lt_u32 s{sW}, 4\ns_cbranch_scc1 {E}_lo")
    if opt.get('PRIO','1')=='1': a("s_setprio 1")
    a.label(f"{E}_lo")
    a.label(f"{E}_round")
    vm=['tab']
    def V(tag, text):
        for l in text.split("\n"):
            a(l)
            if l.startswith('buffer_'): vm.append(tag)
    def younger(tag):
        return len(vm)-1-max(i for i,t in enumerate(vm) if t==tag)
    WDP=opt.get('WDP','0'); SMP=opt.get('SMP','2'); W1P=opt.get('W1P','3')
    def wd():
        a(f"s_lshl_b32 s{t3}, s{sW}, 12\ns_add_u32 m0, s{t3}, {L_WD}\ns_add_u32 s{t0}, s{t3}, {OFF_WF+WF_WD}")
        for m in range(4): V('wd', f"buffer_load_dwordx4 v14, {S4(sWS)}, s{t0} offen offset:{m*1024} lds")
    def w1(v):
        a(f"s_lshl_b32 s{t3}, s{sW}, 12\ns_add_u32 m0, s{t3}, {L_W1}\ns_add_u32 s{t0}, s{t3}, {OFF_WF+WF_W1}")
        for m in range(4): V('w1', f"buffer_load_dwordx4 v{v}, {S4(sWS)}, s{t0} offen offset:{m*1024} lds")
    def small():
        V('sm', f"""s_lshl_b32 s{t2}, s{sH}, 9
s_add_u32 s{t2}, s{t2}, {OFF_WF+WF_WDI}
buffer_load_dword v{ZQ+2}, v{vL4}, {S4(sWS)}, s{t2} offen
buffer_load_dword v{ZQ+3}, v{vL4}, {S4(sWS)}, s{t2} offen offset:256""")
        V('sm2', f"""s_lshl_b32 s{t2}, s{sH}, 11
s_add_u32 s{t2}, s{t2}, {OFF_WF+WF_WA}
buffer_load_dwordx4 {R(WA,4)}, v14, {S4(sWS)}, s{t2} offen
buffer_load_dwordx4 {R(WA+4,4)}, v14, {S4(sWS)}, s{t2} offen offset:1024
s_mov_b32 m0, {L_WX}
s_mov_b32 s{t0}, {OFF_WF+WF_WX}
buffer_load_dword v{vL4}, {S4(sWS)}, s{t0} offen lds""")
    def at(pos, v=14):
        if WDP==pos: wd()
        if SMP==pos: small()
        if W1P==pos: w1(v)
    KT=[[sum(hkey(32*m+4*w+q)<<(4*q+16*(w&1)) for w in (2*w2,2*w2+1) for q in range(4)) for w2 in range(4)] for m in range(3)]
    a(f"""v_lshlrev_b32 v14, 4, v{vLane}
v_lshlrev_b32 v{vL4}, 2, v{vLane}
v_lshrrev_b32 v7, 4, v{vLane}
v_and_b32 v8, 15, v{vLane}
s_lshl_b32 s{t0}, s{sH}, 4
v_lshl_add_u32 v10, v7, 2, s{t0}
v_lshlrev_b32 v11, 8, v7""")
    for m in range(3): a(f"s_mov_b32 s{u0+m}, {hex(KT[m][0])}")
    for w2 in range(1,4):
        a(f"s_cmp_eq_u32 s{sTeam}, {w2}")
        for m in range(3): a(f"s_cselect_b32 s{u0+m}, {hex(KT[m][w2])}, s{u0+m}")
    a(f"s_mul_i32 s{t1}, s{sB}, {98*256}\ns_lshl_b32 s{t3}, s{sW}, 10\ns_add_u32 s{t2}, s{t1}, s{t3}")
    for m in range(3):
        a(f"v_bfe_u32 v{16+m}, s{u0+m}, v10, 4\nv_xor_b32 v{16+m}, v{16+m}, v8\nv_lshl_add_u32 v{16+m}, v{16+m}, 4, v11")
        V('h', f"s_add_u32 m0, s{t3}, {L_MI+m*8192}\ns_add_u32 s{t0}, s{t2}, {m*8192}\nbuffer_load_dwordx4 v{16+m}, {S4(sHH)}, s{t0} offen lds")
    assert hkey(96)==9 and hkey(97)==10
    V('h', f"""v_add_u32 v10, 9, v7
v_xor_b32 v10, v10, v8
v_lshl_add_u32 v19, v10, 4, v11
s_add_u32 s{t0}, s{t1}, {96*256}
s_mov_b32 m0, {L_MI+24*1024}
s_mov_b64 exec, {S2(sLo)}
buffer_load_dwordx4 v19, {S4(sHH)}, s{t0} offen lds
s_mov_b64 exec, -1""")
    V('h', f"""v_lshrrev_b32 v7, 3, v0
s_mul_i32 s{t1}, s{sB}, 98
v_sub_u32 v7, v0, v7
v_cmp_lt_u32 vcc, 95, v0
v_add_u32 v7, s{t1}, v7
v_subrev_u32 v8, 7, v7
v_cndmask_b32 v7, v7, v8, vcc
v_cmp_gt_u32 vcc, 120, v0
v_and_b32 v22, 1, v7
v_mul_u32_u24 v7, 6, v7
v_lshlrev_b32 v22, 4, v22
v_and_b32 v7, -4, v7
v_cndmask_b32 v7, v15, v7, vcc
buffer_load_dwordx2 v[20:21], v7, {S4(sPOS)}, 0 offen""")
    at('0')
    def grp_base(a):
        a(f"""v_and_b32 v{vL31}, 31, v{vLane}
v_lshrrev_b32 v47, 5, v{vLane}""")
    def grp_a(a):
        a(f"""v_lshrrev_b32 v40, 4, v{vL31}
v_bfe_u32 v41, v{vL31}, 2, 1
v_lshl_add_u32 v40, v40, 1, v41
v_and_b32 v41, 3, v{vL31}
v_bfe_u32 v42, v{vL31}, 3, 1
v_lshl_add_u32 v41, v42, 2, v41
v_mul_u32_u24 v43, 7, v40
v_add3_u32 v43, v43, v41, s{sRow0}
v_min_u32 v43, 97, v43
v_and_b32 v44, 15, v{vL31}
v_xor_b32 v44, v44, v47
v_lshlrev_b32 v44, 4, v44
v_lshl_add_u32 v43, v43, 8, v44
v_add_u32 v{vA}, {L_MI}, v43
s_lshl_b32 s{u0}, s{sW}, 12
v_lshlrev_b32 v40, 4, v40
v_lshl_add_u32 v40, v41, 1, v40
v_add_u32 v{vSbase}, s{u0}, v40
v_bfe_u32 v40, v{vL31}, 2, 2
v_xor_b32 v40, v40, v47
v_lshlrev_b32 v40, 4, v40
v_lshl_add_u32 v40, v{vL31}, 6, v40
v_add_u32 v{vSrd[0]}, s{u0}, v40
v_xor_b32 v{vSrd[1]}, 32, v{vSrd[0]}
v_mov_b32 v{vSa}, v{vSbase}""")
    def grp_mi(a):
        a(f"""v_lshrrev_b32 v40, 2, v{vL31}
v_and_b32 v41, 3, v40
v_lshrrev_b32 v42, 2, v40
v_lshl_add_u32 v41, v42, 3, v41
s_lshl_b32 s{u0}, s{sH}, 3
v_xor_b32 v41, s{u0}, v41
v_xor_b32 v41, v41, v47
v_lshlrev_b32 v41, 4, v41
s_add_u32 s{u0}, s{sRow0}, {L_MI//256}
v_add_u32 v40, s{u0}, v40
v_lshl_add_u32 v{vMI}, v40, 8, v41
s_lshl_b32 s{u0}, s{sTeam}, 9
s_add_u32 s{u0}, s{u0}, {L_PD}
v_lshl_add_u32 v{vPD}, v{vL31}, 2, s{u0}
s_lshl_b32 s{u0}, s{sH}, 7
s_add_u32 s{u0}, s{u0}, {L_WX}
v_lshl_add_u32 v{vWX}, v47, 4, s{u0}""")
    def grp_out(a):
        a(f"""s_mul_i32 s{u0}, s{sB}, 98
s_add_u32 s{u0}, s{u0}, s{sRow0}
s_lshl_b32 s{u0}, s{u0}, 8
s_lshl_b32 s{u1}, s{sH}, 7
s_add_u32 s{u0}, s{u0}, s{u1}
v_mul_u32_u24 v40, 1792, v47
v_lshl_add_u32 v40, v{vL31}, 2, v40
v_add_u32 v{vOutA}, s{u0}, v40
s_cmp_ge_u32 s{sTeam}, 2
s_cselect_b32 s{u1}, {BIG}, 0
v_mul_lo_u32 v40, v47, s{u1}
v_add_u32 v{vOutB}, 3584, v{vOutA}
v_add_u32 v{vOutB}, v{vOutB}, v40
s_mov_b64 {S2(sSwap)}, {S2(sLo)}""")
    def grp_sel(a):
        a(f"v_mov_b32 v46, 0x3f80\ns_mov_b32 s{tp}, 1\ns_mov_b32 s{tp+1}, 16")
        for g in range(4):
            for j in range(4):
                a(f"v_cndmask_b32 v{SEL+4*g+j}, 0, v46, {S2(tp)}")
                if (g,j)!=(3,3): a(f"s_lshl_b64 {S2(tp)}, {S2(tp)}, {1 if j<3 else 5}")
    def nib(vals, w): return hex(sum(v<<(w*i) for i,v in enumerate(vals)))
    def grp_scan(a):
        a(f"""v_and_b32 v40, 3, v{vLane}
v_bfe_u32 v41, v{vLane}, 2, 2
v_lshl_add_u32 v42, v40, 2, v41
v_lshlrev_b32 v{vT}, 2, v42
s_mov_b32 s{u0}, 0xc000c000
s_mov_b32 s{u0+1}, 0xc000c000
v_cndmask_b32 v{vMin}, 64, 0, {S2(u0)}
v_lshlrev_b32 v40, 3, v40
s_mov_b32 s{u0}, {nib(TB,8)}
v_bfe_u32 v42, s{u0}, v40, 8
s_movk_i32 s{u0}, {L_IDX//4}
v_lshl_add_u32 v{vTB}, v42, 5, s{u0}
s_mov_b32 s{u0}, {nib([c//32 for c in TCAP],8)}
v_bfe_u32 v42, s{u0}, v40, 8
v_lshlrev_b32 v{vCap}, 5, v42
s_mov_b32 s{u0}, 0xf000f000
s_mov_b32 s{u0+1}, 0xf000f000
v_cndmask_b32 v{vM31}, 0, 31, {S2(u0)}
s_lshl_b32 s{u0}, s{sH}, 3
s_add_u32 s{u0}, s{u0}, s{sTeam}
s_lshl_b32 s{u0}, s{u0}, 2
v_lshl_add_u32 v{vBP}, v47, 4, s{u0}
v_mov_b32 v{vC0p}, {7*256+48}
v_mov_b32 v{vC1p}, {(7*256+48)^128}
v_mov_b32 v{vBig}, {BIG}
s_lshl_b32 s{u0}, s{sTeam}, 3
s_lshr_b32 s{u0}, {nib(TB,8)}, s{u0}
s_and_b32 s{u0}, s{u0}, 0xff
s_lshl_b32 s{u0}, s{u0}, 7
s_add_u32 s{sTBb}, s{u0}, {L_IDX}
v_lshl_add_u32 v{vIdx}, v47, 4, s{sTBb}
s_movk_i32 s{u0}, {AS}
v_mad_u32_u24 v40, v47, s{u0}, s{u0}
v_lshl_add_u32 v40, v{vL31}, 2, v40
v_add_u32 v{vX}, s{sTBb}, v40""")
    def grp_zero(a):
        a(f"""v_mov_b32 v40, 0
v_mov_b32 v41, 0
v_mov_b32 v42, 0
v_mov_b32 v43, 0
s_lshl_b32 s{u0}, s{sW}, 12
v_add_u32 v44, s{u0}, v14
ds_write_b32 v{vL4}, v40 offset:{L_CNT}""")
        for m in range(4): a(f"ds_write_b128 v44, v[40:43] offset:{L_S+m*1024}")
    def grp_pa(a):
        a(f"s_cmp_eq_u32 s{sW}, {opt.get('PAW','3')}\ns_cbranch_scc1 {E}_pa")
        a.label(f"{E}_pad")
    def pablk():
        a.label(f"{E}_pa")
        a(f"""v_mov_b32 v46, 0x3f80
v_bfe_u32 v40, v{vLane}, 4, 1
v_bfe_u32 v41, v{vLane}, 1, 3
v_and_b32 v42, 1, v{vLane}
v_lshlrev_b32 v43, 11, v40
v_lshl_add_u32 v43, v41, 8, v43
v_lshl_add_u32 v43, v42, 7, v43
v_and_b32 v44, 3, v41
v_lshl_add_u32 v43, v44, 4, v43
v_xor_b32 v40, v40, v42
v_lshl_add_u32 v40, v40, 4, v41""")
        for d in range(4):
            a(f"v_cmp_eq_u32 vcc, {2*d}, v40\nv_cndmask_b32 v{36+d}, 0, v46, vcc")
            if d < 3: a(f"v_cmp_eq_u32 vcc, {2*d+1}, v40\nv_cndmask_b32 v{36+d}, v{36+d}, 1.0, vcc")
        a(f"ds_write_b128 v43, v[36:39] offset:{L_PA}\ns_branch {E}_pad")
    outl.append(pablk)
    GR=dict(a=grp_a, m=grp_mi, o=grp_out, s=grp_sel, c=grp_scan, z=grp_zero, p=grp_pa)
    SO=opt.get('SO','zasc.p.mo').split('.')
    grp_base(a)
    for g in SO[0]: GR[g](a)
    a(f"""v_and_b32 v12, 1, v0
v_cmp_eq_u32 vcc, 0, v12
v_mul_u32_u24 v6, 1600, v6
s_mov_b32 s{sBias}, {-DBIAS*32}
s_waitcnt vmcnt({younger('tab')})""")
    ts("tab")
    at('1')
    a(f"""v_lshrrev_b32 v10, 16, v9
v_and_b32 v9, 0xffff, v9
v_cndmask_b32 v11, 0, v10, vcc
v_add_u32 v9, v9, v6""")
    wave_scan(a, 11)
    a(f"""v_readlane_b32 s{t0}, v11, 63
v_sub_u32 v11, v11, v10
v_sub_u32 v13, v10, v12
s_sub_u32 s{t1}, s{t0}, s{sWin}
s_min_u32 s{sN}, s{t1}, s{sCap}
s_sub_u32 s{sMore}, s{t1}, s{sN}
v_subrev_u32 v11, s{sWin}, v11
v_sub_u32 v9, v9, v11
v_add_lshl_u32 v11, v11, v12, 2
s_cmp_lg_u32 s{t0}, s{sN}
s_cbranch_scc1 {E}_exp
v_add_u32 v7, s{sRPb}, v11""")
    for k in range(8): a(f"v_cmpx_lt_i32 vcc, {2*k}, v13\nds_write_b32 v7, v9 offset:{L_RP+8*k}")
    a(f"v_cmpx_lt_i32 vcc, 16, v13\ns_cbranch_execnz {E}_exp2")
    a.label(f"{E}_expd")
    def expblk():
        a.label(f"{E}_exp2")
        a("v_add_u32 v12, 16, v12\nv_add_u32 v11, 64, v11")
        a.label(f"{E}_exp")
        a(f"s_lshl_b32 s{t1}, s{sN}, 2")
        a.label(f"{E}_expl")
        a(f"""v_cmpx_lt_u32 vcc, v12, v10
s_cbranch_execz {E}_expd
v_min_u32 v7, s{t1}, v11
v_add_u32 v7, s{sRPb}, v7
ds_write_b32 v7, v9 offset:{L_RP}
v_add_u32 v12, 2, v12
v_add_u32 v11, 8, v11
s_branch {E}_expl""")
    outl.append(expblk)
    a(f"s_mov_b64 exec, -1\nv_add_u32 v7, s{sRPb}, v{vL4}")
    for i in range(4): a(f"ds_read_b32 v{REC+4*i+3}, v7 offset:{L_RP+i*256}")
    for i in range(5):
        a(f"s_sub_u32 s{t0}, s{sN}, {64*i}\nv_cmp_gt_i32 {S2(sV+2*i)}, s{t0}, v{vLane}")
    a(f"s_mov_b32 s{t1}, {OFF_REC}")
    def recld(i, cnt=True):
        p=REC+4*i+3
        if i: a(f"v_add3_u32 v{p}, v{p}, v{vLane}, s{t0}" if 64*i>64 else f"v_add3_u32 v{p}, v{p}, v{vLane}, 64")
        else: a(f"v_add_u32 v{p}, v{p}, v{vLane}")
        a(f"""v_mul_u32_u24 v{p-3}, 12, v{p}
v_cndmask_b32 v{p-3}, v15, v{p-3}, {S2(sV+2*i)}
buffer_load_dwordx3 {R(p-3,3)}, v{p-3}, {S4(sWS)}, s{t1} offen""")
        if cnt: vm.append('rec')
    for i in range(4):
        if i>1: a(f"s_movk_i32 s{t0}, {64*i}")
        a(f"s_waitcnt lgkmcnt({3-i})"); recld(i)
    def fifth(tag, fn):
        a(f"s_cmp_gt_u32 s{sN}, 256\ns_cbranch_scc1 {E}_5{tag}")
        a.label(f"{E}_5{tag}d")
        def blk():
            a.label(f"{E}_5{tag}"); fn(); a(f"s_branch {E}_5{tag}d")
        outl.append(blk)
    def f5a():
        a(f"ds_read_b32 v{REC+19}, v7 offset:{L_RP+1024}\ns_movk_i32 s{t0}, 256\ns_waitcnt lgkmcnt(0)"); recld(4, False)
        a(f"v_lshl_add_u32 v{REC+19}, v{REC+19}, 5, s{sBias}")
    fifth('a', f5a)
    ts("rec")
    at('2')
    for i in range(4): a(f"v_lshl_add_u32 v{REC+4*i+3}, v{REC+4*i+3}, 5, s{sBias}")
    for g in SO[1]: GR[g](a)
    a(f"""s_lshl_b32 s{t0}, s{sH}, 14
s_add_u32 s{t1}, s{t0}, {L_WD}
v_add_u32 v12, s{t1}, v14
v_lshlrev_b32 v10, 4, v0
s_waitcnt vmcnt({min(younger('h'),younger('wd'))})
v_alignbit_b32 v20, v21, v20, v22
v_lshrrev_b32 v21, v22, v21
v_lshlrev_b32 v24, 16, v20
v_and_b32 v25, s{sHi16}, v20
v_lshlrev_b32 v26, 16, v21
v_mov_b32 v27, 0
v_cmp_gt_u32 vcc, 128, v0
s_mov_b64 exec, vcc
ds_write_b128 v10, v[24:27] offset:{L_POSD}
s_mov_b64 exec, -1
s_waitcnt lgkmcnt(0)
s_barrier""")
    ts("b1")
    def aread(k, base=None):
        d=TT+4*k if base is None else base[k]
        if k == 0: a(f"ds_read_b128 {R(d,4)}, v{vA}")
        else: a(f"v_xor_b32 v9, {32*k}, v{vA}\nds_read_b128 {R(d,4)}, v9")
    ZZ=(Z0,Z1)
    BF=[16,24,32,100,108]
    late=[]
    for g in SO[2]: late+=cap(GR[g])
    for k in range(4):
        aread(k)
        for z in range(2): a(f"ds_read_b128 {R(BF[k]+4*z,4)}, v12 offset:{(2*k+z)*1024}")
    for k in range(8):
        a(f"s_waitcnt lgkmcnt({9 if k<5 else 3*(7-k)})")
        for z in range(2): mfma(a, ZZ[z], TT+4*k, BF[k%5]+4*z, ZZ[z] if k else None)
        if k<4:
            aread(k+4)
            for z in range(2): a(f"ds_read_b128 {R(BF[(k+4)%5]+4*z,4)}, v12 offset:{(2*k+8+z)*1024}")
        n=(len(late)+(7-k))//(8-k)
        for l in late[:n]: a(l)
        late=late[n:]
    a(f"s_waitcnt vmcnt({younger('sm')})")
    for z in range(2):
        D=ZZ[z]
        for r in range(0,16,2): a(f"v_pk_mul_f32 {R(D+r,2)}, {R(D+r,2)}, {S2(sL2E)}")
        for hh in range(2):
            o=(PP,F23)[hh]+4*z
            for d in range(4): a(f"v_cvt_pk_bf16_f32 v{o+d}, v{D+8*hh+2*d}, v{D+8*hh+2*d+1}")
            a(f"v_bfi_b32 v{o+3}, s{sHi16}, v{ZQ+2+z}, v{o+3}")
    for r in range(4): a(f"v_mov_b32 v{ZQ+r}, 0")
    a(f"v_mov_b32 v46, 1\nv_mov_b32 v45, s{sMore}\nv_lshlrev_b32 v44, 4, v{vLane}\ns_waitcnt vmcnt({younger('rec')})")
    ts("recw")
    def rank(i):
        r=REC+4*i
        a(f"""v_lshrrev_b32 v{CA+i}, 25, v{r}
v_lshlrev_b32_sdwa v{POSR+4*i}, 4, v{r} dst_sel:DWORD dst_unused:UNUSED_PAD src0_sel:DWORD src1_sel:BYTE_3
v_and_b32 v{CA+i}, 60, v{CA+i}
s_mov_b64 exec, {S2(sV+2*i)}
ds_add_rtn_u32 v{RANK+i}, v{CA+i}, v46 offset:{L_CNT}
s_mov_b64 exec, -1
ds_read_b128 {R(POSR+4*i,4)}, v{POSR+4*i} offset:{L_POSD}""")
    def pre(i):
        r=REC+4*i
        a(f"""v_bfe_u32 v{rC0+i}, v{r}, 16, 12
v_mad_u32_u16 v{r+3}, v{r+2}, 32, v{r+3} op_sel:[1,0,0,0]
v_mad_u32_u16 v{r}, v{r}, 8, 0
v_xor_b32 v{rC1+i}, 128, v{rC0+i}
v_add_u32 v{rE1+i}, 16, v{r+3}""")
    def diffs(I):
        for i in I:
            r=REC+4*i; d=POSR+4*i
            a(f"v_dot2_f32_bf16 v{d}, v{r+1}, s{sKlo}, v{d}\nv_dot2_f32_bf16 v{d+1}, v{r+1}, s{sKhi}, v{d+1}\nv_dot2_f32_bf16 v{d+2}, v{r+2}, s{sKlo}, v{d+2}")
        for i in I:
            d=POSR+4*i
            a(f"v_cvt_pk_bf16_f32 v{d+1}, v{d+2}, v{d+1}\nv_cvt_pk_bf16_f32 v{d+2}, v{d}, 0")
        for i in I:
            d=POSR+4*i; a(f"v_dot2_f32_bf16 v{d+3}, v{d+1}, v{d+1}, 0")
        for i in I:
            d=POSR+4*i; a(f"v_dot2_f32_bf16 v{d+3}, v{d+2}, v{d+2}, v{d+3}")
        for i in I:
            d=POSR+4*i; a(f"v_cvt_pk_bf16_f32 v{d}, v{d}, v{d+3}")
    for i in range(4): rank(i)
    def f5b():
        rank(4); pre(4); a("s_waitcnt lgkmcnt(0)"); diffs([4])
    fifth('b', f5b)
    a(f"s_mov_b64 exec, 1\nds_or_b32 v{ZQ}, v45 offset:{L_CNT+64}\ns_mov_b64 exec, -1")
    at('3', 44)
    for i in range(4): pre(i)
    a("s_waitcnt lgkmcnt(0)")
    DB=opt.get('DB','1')=='1'
    if DB: diffs(range(4))
    a(f"s_barrier")
    ts("b2")
    a(f"""ds_read_b32 v21, v{vT} offset:{L_CNT}
ds_read_b32 v22, v{ZQ} offset:{L_CNT+64}""")
    if not DB: diffs(range(4))
    a(f"""s_add_u32 s{t1}, s{sTeam}, 4
s_add_u32 s{t2}, s{sTeam}, 8
s_add_u32 s{t3}, s{sTeam}, 12
s_waitcnt lgkmcnt(1)
v_max_u32 v23, v21, v{vMin}
v_sub_u32 v31, v{vTB}, v23
v_sub_u32 v38, v23, v21
v_add_u32_dpp v29, v23, v23 row_shr:4 row_mask:0xf bank_mask:0xf bound_ctrl:1
v_add_u32 v37, v31, v21
v_lshlrev_b32 v{vFk}, 3, v{vLane}
v_add_u32_dpp v29, v29, v29 row_shr:8 row_mask:0xf bank_mask:0xf bound_ctrl:1
v_add_u32 v30, v29, v31
ds_write_b32 v{vT}, v30 offset:{L_CNT+128}""")
    for i in range(4): a(f"ds_read_b32 v{rST+i}, v{CA+i} offset:{L_CNT+128}")
    a(f"""v_cmp_gt_u32 vcc, v29, v{vCap}
v_sub_u32 v39, 0, v29
v_add_u32 v37, v37, v29
v_and_b32 v39, v{vM31}, v39
v_add_u32 v38, v38, v39
s_cbranch_vccnz {E}_retry
ds_bpermute_b32 v45, v{vBP}, v37
ds_bpermute_b32 v46, v{vBP}, v38
v_readlane_b32 s{sCnt}, v29, s{sTeam}
v_readlane_b32 s{sD1}, v29, s{t1}
v_readlane_b32 s{sD2}, v29, s{t2}
v_readlane_b32 s{sNT}, v29, s{t3}
s_waitcnt lgkmcnt(2)""")
    ts("_gsc")
    def blkw(i):
        r=REC+4*i; d=POSR+4*i; b=rST+i
        a(f"""s_mov_b64 exec, {S2(sV+2*i)}
ds_write_b32 v{b}, v{r}
ds_write2st64_b32 v{b}, v{d}, v{d+1} offset0:{AU} offset1:{2*AU}
ds_write2st64_b32 v{b}, v{rC0+i}, v{rC1+i} offset0:{3*AU} offset1:{4*AU}
ds_write2st64_b32 v{b}, v{r+3}, v{rE1+i} offset0:{5*AU} offset1:{6*AU}""")
    for i in range(4): a(f"v_add_lshl_u32 v{rST+i}, v{rST+i}, v{RANK+i}, 2")
    for i in range(4):
        blkw(i)
        if i==1: a("s_waitcnt lgkmcnt(8)")
    a("s_mov_b64 exec, -1")
    def f5d():
        a(f"ds_read_b32 v{rST+4}, v{CA+4} offset:{L_CNT+128}\ns_waitcnt lgkmcnt(0)\nv_add_lshl_u32 v{rST+4}, v{rST+4}, v{RANK+4}, 2"); blkw(4); a("s_mov_b64 exec, -1")
    fifth('d', f5d)
    ts("_blk")
    clamp=''
    if SAFE: clamp=''.join(f"s_min_i32 s{x}, s{x}, 64\ns_max_i32 s{x}, s{x}, {lo}\n" for x,lo in ((sCnt,0),(sD1,0),(sD2,0),(sD3,-1)))
    a(f"""s_add_u32 s{sNT}, s{sNT}, 31
s_lshr_b32 s{sNT}, s{sNT}, 5
s_sub_u32 s{sCnt}, s{sCnt}, 1
s_lshr_b32 s{sCnt}, s{sCnt}, 5
s_sub_u32 s{sD1}, s{sD1}, 1
s_lshr_b32 s{sD1}, s{sD1}, 5
s_sub_u32 s{sD2}, s{sD2}, 1
s_lshr_b32 s{sD2}, s{sD2}, 5
s_sub_u32 s{sD3}, s{sNT}, s{sD2}
s_sub_u32 s{sD3}, s{sD3}, 2
s_sub_u32 s{sD2}, s{sD2}, s{sD1}
s_sub_u32 s{sD2}, s{sD2}, 1
s_sub_u32 s{sD1}, s{sD1}, s{sCnt}
s_sub_u32 s{sD1}, s{sD1}, 1
{clamp}s_add_u32 s{t1}, s{sNT}, s{sH}
s_lshl_b32 s{t2}, s{t1}, 7
s_add_u32 s{t0}, s{sTBb}, s{t2}
s_and_b32 s{t1}, s{t1}, 1
s_lshl_b32 s{t1}, s{t1}, 8
s_add_u32 s{t1}, s{t1}, {W2ROW0*8}
v_add_u32 v34, s{t0}, v{vL4}
v_add_u32 v35, s{t1}, v{vFk}
v_add_lshl_u32 v45, v45, v{vL31}, 2
s_mov_b64 exec, {S2(sLo)}
ds_write_b32 v34, v35
s_mov_b64 exec, -1""")
    def padw():
        a(f"""ds_write_b32 v45, v{ZQ}
ds_write2st64_b32 v45, v{ZQ}, v{ZQ} offset0:{AU} offset1:{2*AU}
ds_write2st64_b32 v45, v{vC0p}, v{vC1p} offset0:{3*AU} offset1:{4*AU}
ds_write2st64_b32 v45, v{vBig}, v{vBig} offset0:{5*AU} offset1:{6*AU}""")
    a(f"v_cmp_lt_u32 {S2(tp)}, 32, v46\nv_cmpx_gt_u32 vcc, v46, v{vL31}")
    padw()
    a(f"s_cmp_lg_u64 {S2(tp)}, 0\ns_cbranch_scc1 {E}_padl")
    a.label(f"{E}_padd")
    def padblk():
        a.label(f"{E}_padl")
        a(f"v_subrev_u32 v46, 32, v46\nv_add_u32 v45, 128, v45\nv_cmpx_gt_i32 vcc, v46, v{vL31}\ns_cbranch_execz {E}_padd")
        padw()
        a(f"s_branch {E}_padl")
    outl.append(padblk)
    a("s_mov_b64 exec, -1")
    ts("_pad")
    a(f"v_readfirstlane_b32 s{sMore}, v22\ns_waitcnt vmcnt(0) lgkmcnt(0)\ns_barrier")
    ts("b3")
    def qload(u, r):
        if SAFE: a(f"v_and_b32 v{QB[u]+r}, 0xffff8, v{QB[u]+r}")
        if opt.get('Q0'): a(f"buffer_load_dword v{QB[u]+r}, v{ZQ}, {S4(sQ)}, 0 offen")
        else: a(f"buffer_load_dword v{QB[u]+r}, v{QB[u]+r}, {S4(sQ)}, 0 offen")
    def eaload(u, v): a(f"buffer_load_dwordx4 {R(EA[u],4)}, v{ZQ if opt.get('E0') else v}, {S4(sEA)}, 0 offen")
    for u in range(2):
        a(f"ds_read_b32 v{6+u}, v{vX} offset:{4*AS+u*128}")
        for q in range(4): a(f"ds_read_b128 {R(QB[u]+4*q,4)}, v{vIdx} offset:{u*128+q*32}")
    a(f"ds_read2st64_b32 {R(vRC[0],2)}, v{vX} offset1:{2*AU}")
    a("s_waitcnt lgkmcnt(10)"); eaload(0, 6)
    for r in range(16):
        if r%4==0: a(f"s_waitcnt lgkmcnt({9-r//4})")
        qload(0, r)
    a("s_waitcnt lgkmcnt(0)"); eaload(1, 7)
    a(f"ds_read_b128 {R(PA,4)}, v{vRC[0]+1} offset:{L_PA}")
    a(f"s_lshl_b32 s{t0}, s{sH}, 14\ns_add_u32 s{t0}, s{t0}, {L_W1}\nv_lshl_add_u32 v13, v{vLane}, 4, s{t0}\nv_add_u32 v{vX}, 128, v{vX}")
    for f in range(12): a(f"ds_read_b128 {R(Z0+4*f,4)}, v13 offset:{f*1024}")
    for r in range(16): qload(1, r)
    for r in range(8): a(f"v_mov_b32 v{SF+r}, 0")
    def patch(u): a(f"v_bfi_b32 v{PA+3}, s{sHi16}, v{vRC[u]}, v{PA+3}")
    a(f"s_cmp_eq_u32 s{sFirst}, 0\ns_waitcnt lgkmcnt(10)"); patch(0)
    for f in range(12,16): a(f"ds_read_b128 {R(Z0+4*f,4)}, v13 offset:{f*1024}")
    a(f"s_cbranch_scc1 {E}_noh")
    for k in range(8):
        a(f"s_waitcnt lgkmcnt({14-2*k})")
        for z in range(2): mfma(a, YY+16*z, TT+4*k, Z0+8*k+4*z, YY+16*z if k else None)
    a.label(f"{E}_noh")
    a("s_waitcnt lgkmcnt(0)")
    mfma(a, TT, ZQ, ZQ, None); mfma(a, TT+16, ZQ, ZQ, None)
    mfma(a, Z0, PA, PP, None)
    a(f"s_cbranch_scc1 {E}_noh2")
    for r in range(0,32,2): a(f"v_pk_mul_f32 {R(YY+r,2)}, {R(YY+r,2)}, {S2(sL2E)}")
    a.label(f"{E}_noh2")
    ts("pre")
    a("s_waitcnt vmcnt(17)")
    mfma(a, Z0, EA[0], WA, Z0)
    for g in range(4): mfma(a, Z0, SEL+4*g, QB[0]+4*g, Z0)
    def seg(i):
        T=TT+16*(i>>1); M=(M0,M1)[i>>1]+4*(i&1)
        mfma(a, T, M, SF+4*(i&1), T)
    def trans(op, Zs, lo, hi):
        if opt.get('NOTR'): return
        for r in range(lo, hi):
            if op == 'exp': a(f"v_exp_f32 v{EE+r}, {SG}v{Zs+r}")
            else: a(f"v_rcp_f32 v{EE+r}, v{EE+r}")
    def pkadd():
        for r in range(0,16,2): a(f"v_pk_add_f32 {R(EE+r,2)}, {R(EE+r,2)}, {S2(sOne)}")
    def pkmul(Zs):
        for r in range(0,16,2): a(f"v_pk_mul_f32 {R(EE+r,2)}, {R(EE+r,2)}, {R(Zs+r,2)}")
    def body(u):
        nu=u^1
        a(f"ds_read2st64_b32 {R(vRC[nu],2)}, v{vX} offset1:{2*AU}\nds_read_b32 v{vE}, v{vX} offset:{4*AS+128}")
        mfma(a, Z1, EA[u], WA+4, QB[u]); trans('exp', Z0, 0, 5)
        mfma(a, Z1, PA, PP+4, Z1); trans('exp', Z0, 5, 7)
        a(f"s_waitcnt lgkmcnt(0)\nds_read_b128 {R(PA,4)}, v{vRC[nu]+1} offset:{L_PA}")
        for q in range(4): a(f"ds_read_b128 {R(QB[u]+4*q,4)}, v{vIdx} offset:{(u+2)*128+q*32}")
        eaload(u, vE)
        trans('exp', Z0, 7, 10)
        seg(0); trans('exp', Z0, 10, 16)
        pkadd()
        seg(1); trans('rcp', Z0, 0, 2)
        a(f"s_waitcnt lgkmcnt(0)")
        rr=2
        for r in range(16):
            qload(u, r)
            if r in (1,3,5): trans('rcp', Z0, rr, rr+1); rr+=1
            if r == 5: seg(2)
            if r in (7,9,11,13,15): trans('rcp', Z0, rr, rr+1); rr+=1
        seg(3); trans('rcp', Z0, 10, 16)
        pkmul(Z0); patch(nu)
        for d in range(8): a(f"v_cvt_pk_bf16_f32 v{M0+d}, v{EE+2*d}, v{EE+2*d+1}")
        a(f"ds_write_b16 v{vSa}, v{ZQ}\nds_write_b16 v{vSa}, v{ZQ} offset:64")
        a(f"""v_xor_b32 v{vSa}, v{vRC[u]+1}, v{vSbase}
v_cndmask_b32 v{vR2}, v{vRC[u]}, 1.0, {S2(sLo)}
ds_write_b16 v{vSa}, v{vRC[u]} offset:64
ds_write_b16_d16_hi v{vSa}, v{vR2}""")
        mfma(a, Z0, PA, PP, None); trans('exp', Z1, 0, 2)
        a(f"ds_read_b128 {R(SF,4)}, v{vSrd[0]}\nds_read_b128 {R(SF+4,4)}, v{vSrd[1]}")
        trans('exp', Z1, 2, 5)
        a("s_waitcnt vmcnt(17)")
        mfma(a, Z0, EA[nu], WA, Z0); trans('exp', Z1, 5, 10)
        mfma(a, Z0, SEL, QB[nu], Z0); trans('exp', Z1, 10, 16)
        pkadd()
        mfma(a, Z0, SEL+4, QB[nu]+4, Z0); trans('rcp', Z1, 0, 5)
        mfma(a, Z0, SEL+8, QB[nu]+8, Z0); trans('rcp', Z1, 5, 10)
        mfma(a, Z0, SEL+12, QB[nu]+12, Z0); trans('rcp', Z1, 10, 16)
        pkmul(Z1)
        if u == 1: a(f"v_add_u32 v{vIdx}, 256, v{vIdx}")
        a(f"v_add_u32 v{vX}, 128, v{vX}")
        a(f"s_sub_u32 s{sCnt}, s{sCnt}, 1")
        for d in range(8): a(f"v_cvt_pk_bf16_f32 v{M1+d}, v{EE+2*d}, v{EE+2*d+1}")
    def flush(final):
        for q in range(4): a(f"ds_read_b128 {R(EE+4*q,4)}, v{vWX} offset:{q*32}")
        a("s_waitcnt lgkmcnt(4)")
        for i in (0,2,1,3): seg(i)
        if not final:
            a(f"v_xor_b32 v{vSrd[0]}, 0x800, v{vSrd[0]}\nv_xor_b32 v{vSrd[1]}, 0x800, v{vSrd[1]}")
            a(f"ds_read_b128 {R(SF,4)}, v{vSrd[0]}\nds_read_b128 {R(SF+4,4)}, v{vSrd[1]}")
            a(f"s_mov_b64 exec, {S2(sSwap)}")
            for k in range(8): a(f"v_mov_b32 v{PP+k}, v{F23+k}")
            a(f"""s_mov_b64 exec, -1
s_not_b64 {S2(sSwap)}, {S2(sSwap)}
s_mov_b32 s{sCnt}, s{sD1}
s_mov_b32 s{sD1}, s{sD2}
s_mov_b32 s{sD2}, s{sD3}
s_mov_b32 s{sD3}, -1
s_setprio 0""")
        for q in range(1,4): a(f"v_xor_b32 v{11+q}, {32*q}, v{vMI}")
        for d in range(16): a(f"v_cvt_pk_bf16_f32 v{TT+d}, v{TT+2*d}, v{TT+2*d+1}")
        a(f"s_mov_b64 exec, {S2(sMIm)}")
        for q in range(4): a(f"ds_write_b128 v{11+q if q else vMI}, {R(TT+4*q,4)}")
        a(f"s_mov_b64 exec, -1\ns_waitcnt lgkmcnt({4 if final else 6})")
        for q in range(4): mfma(a, Z1, EE+4*q, TT+4*q, Z1 if q else None)
        if not final:
            mfma(a, TT+16, ZQ, ZQ, None); mfma(a, TT, ZQ, ZQ, None)
            a(f"v_add_u32 v{vMI}, 1792, v{vMI}\nv_xor_b32 v{vMI}, 64, v{vMI}")
        a(f"s_mov_b64 exec, {S2(sLo)}\nds_add_f32 v{vPD}, v{Z1}\ns_mov_b64 exec, -1")
        if not final: a(f"v_add_u32 v{vPD}, 128, v{vPD}")
    ts("loop")
    a("s_nop 7\ns_nop 1\n.p2align 3")
    a.label(f"{E}_l0")
    body(0); a(f"s_cbranch_scc1 {E}_ev0")
    a.label(f"{E}_l1")
    body(1); a(f"s_cbranch_scc0 {E}_l0")
    for u in (1,0):
        a.label(f"{E}_ev{u}")
        a(f"s_cmp_eq_u32 s{sD1}, -1\ns_cbranch_scc1 {E}_tail")
        flush(False)
        a(f"s_branch {E}_l{u^1}")
    a.label(f"{E}_tail")
    ts("tail")
    W2B=PP
    a(f"v_lshlrev_b32 v14, 4, v{vLane}\ns_add_u32 s{t1}, s{sW2}, 4096")
    for f in range(8): a(f"buffer_load_dwordx4 {R(W2B+4*f,4)}, v14, {S4(sWS)}, s{sW2 if f<4 else t1} offen offset:{(f&3)*1024}")
    hreg={}
    n=0
    for r in range(16):
        if r&7 == 7: continue
        hreg[r]=Z0+n; n+=1
        a(f"buffer_load_dword v{hreg[r]}, v{vOutA if r<8 else vOutB}, {S4(sHH)}, 0 offen offset:{(r&7)*256}")
    flush(True)
    a("s_waitcnt lgkmcnt(0)\ns_barrier")
    ts("bar")
    for k in range(8): aread(k)
    W2R=[QB[0]+4*f for f in range(8)]+[W2B+4*f for f in range(8)]
    a("s_waitcnt vmcnt(14)")
    for k in range(8):
        a(f"s_waitcnt lgkmcnt({7-k})")
        for z in range(2): mfma(a, YY+16*z, TT+4*k, W2R[2*k+z], YY+16*z)
    a(f"s_cmp_lg_u32 s{sMore}, 0\ns_cbranch_scc1 {E}_more")
    a("s_waitcnt vmcnt(0)")
    a(f"s_cmp_lt_u32 s{sW}, 4\ns_cbranch_scc1 {E}_nopos\ns_cmp_eq_u32 s{sW}, 7\ns_cbranch_scc1 {E}_nopos")
    srd(a, sPOS, pOUT, 150000, 6400000)
    a(f"v_subrev_u32 v6, 256, v0\nv_lshlrev_b32 v7, 1, v6\ns_movk_i32 s{t0}, 0x5556")
    for x in range(2):
        a(f"""v_add_u32 v8, {x}, v7
v_mul_u32_u24 v9, s{t0}, v8
v_lshrrev_b32 v9, 16, v9
v_mul_u32_u24 v10, 3, v9
v_sub_u32 v8, v8, v10
v_mul_u32_u24 v10, 147, v9
v_lshrrev_b32 v10, 10, v10
v_mul_u32_u24 v11, 7, v10
v_sub_u32 v9, v9, v11
v_add_u32 v11, 5, v10
v_lshrrev_b32 v11, 4, v11
v_add_u32 v10, v10, v11
v_lshl_add_u32 v9, v10, 3, v9
v_lshl_add_u32 v9, v9, 2, v8
v_lshlrev_b32 v9, 2, v9
ds_read_b32 v{12+2*x}, v9 offset:{L_PD+4}
ds_read_b32 v{13+2*x}, v9 offset:{L_POSD}""")
    a(f"""s_mul_i32 s{t1}, s{sB}, 588
v_lshl_add_u32 v7, v6, 2, s{t1}
v_cmp_gt_u32 vcc, 147, v6
s_mov_b32 s{t0}, {LN2}
s_waitcnt lgkmcnt(0)
v_fma_f32 v12, v12, s{t0}, v13
v_fma_f32 v14, v14, s{t0}, v15
v_cvt_pk_bf16_f32 v12, v12, v14
s_mov_b64 exec, vcc
buffer_store_dword v12, v7, {S4(sPOS)}, 0 offen
s_mov_b64 exec, -1""")
    a.label(f"{E}_nopos")
    X=QB[0]; HU=TT
    valid=[r for r in range(16) if r&7 != 7]
    for z in range(2):
        for r in valid: a(f"v_exp_f32 v{X+16*z+r}, {SG}v{YY+16*z+r}")
    for z in range(2):
        for r in range(0,16,2): a(f"v_pk_fma_f32 {R(X+16*z+r,2)}, {R(X+16*z+r,2)}, {S2(sL2E)}, {S2(sL2E)}")
    for z in range(2):
        for r in valid: a(f"v_rcp_f32 v{X+16*z+r}, v{X+16*z+r}")
    for r in valid:
        a(f"v_lshlrev_b32 v{HU+r}, 16, v{hreg[r]}\nv_and_b32 v{HU+16+r}, s{sHi16}, v{hreg[r]}")
    for r in range(0,16,2):
        for z in range(2): a(f"v_pk_fma_f32 {R(X+16*z+r,2)}, {R(X+16*z+r,2)}, {R(YY+16*z+r,2)}, {R(HU+16*z+r,2)}")
        for rr in (r,r+1):
            if rr in valid:
                a(f"v_cvt_pk_bf16_f32 v{X+rr}, v{X+rr}, v{X+16+rr}")
                a(f"buffer_store_dword v{X+rr}, v{vOutA if rr<8 else vOutB}, {S4(sOUT)}, 0 offen offset:{(rr&7)*256} {ST}")
    if opt.get('DLY2'):
        a(f"s_movk_i32 s90, {opt['DLY2']}"); a.label("L_k2_dly")
        for i in range(16): a("v_exp_f32 v200, v200")
        a("s_sub_u32 s90, s90, 1\ns_cbranch_scc0 L_k2_dly")
    ts("st"); ts.dump()
    a("s_endpgm")
    a.label(f"{E}_retry")
    a(f"s_lshr_b32 s{sCap}, s{sCap}, 2\ns_branch {E}_again")
    a.label(f"{E}_more")
    a(f"s_mov_b32 s{sFirst}, 0\ns_add_u32 s{sWin}, s{sWin}, s{sN}")
    a.label(f"{E}_again")
    if SAFE: a(f"s_add_u32 s93, s93, 1\ns_cmp_gt_u32 s93, 3000\ns_cbranch_scc1 {E}_end")
    a("s_waitcnt vmcnt(0) lgkmcnt(0)\ns_barrier")
    tabaddr()
    a(f"buffer_load_dword v9, v7, {S4(sWS)}, s{sTabO} offen\ns_branch {E}_round")
    for f in outl: f()
    a.label(f"{E}_end")
    a("s_endpgm")
    gen_k2.names=ts.names
    return a.lines, 256, K2_LDS
```

```python
from asmlib import *
OFF_Q=0; OFF_EAP=0x800000; OFF_REC=0x1500000; OFF_TAB=0x1A00000; OFF_WF=0x1A80000
WF_WD=0; WF_W1=32768; WF_W2=65536; WF_WA=98304; WF_WDI=102400; WF_WX=103424
WS_USED=OFF_WF+0x20000
import os
NEG=int(os.environ.get('NEG','1'))
LOG2E='0xbfb8aa3b' if NEG else '0x3fb8aa3b'
LN2='0xbf317218' if NEG else '0x3f317218'
SG='' if NEG else '-'
BIG='0x40000000'
DBIAS=2048
assert all((d*42800)>>22 == d//98 for d in range(25088))
assert all((n*147)>>10 == n//7 for n in range(98))

def srd(a, d, b, n, off=0):
    if off:
        a(f"s_add_u32 s{d}, s{b}, {off}\ns_addc_u32 s{d+1}, s{b+1}, 0")
    else:
        a(f"s_mov_b32 s{d}, s{b}\ns_mov_b32 s{d+1}, s{b+1}")
    a(f"s_mov_b32 s{d+2}, {n}\ns_mov_b32 s{d+3}, 0x20000")

def wave_scan(a, v):
    for sh in (1,2,4,8):
        a(f"v_add_u32_dpp v{v}, v{v}, v{v} row_shr:{sh} row_mask:0xf bank_mask:0xf bound_ctrl:1")
    a(f"v_add_u32_dpp v{v}, v{v}, v{v} row_bcast:15 row_mask:0xa bank_mask:0xf")
    a(f"v_add_u32_dpp v{v}, v{v}, v{v} row_bcast:31 row_mask:0xc bank_mask:0xf")

def gen_k1(name, ST="", opt={}):
    DM = opt.get('DM')
    L_REC=0; L_CNT=19200; L_START=20224; L_INV=21248; L_H=24576; L_W=L_H+25600+0; L_W=(L_W+1023)//1024*1024; L_EA=L_W+32768
    K1_LDS = L_EA if DM else L_EA+51200
    a = Asm(); ts=TS(a, opt.get("TS"), list(range(68,100,2)), 0, 24, 3, 2, 32, 4)
    E=f"L_{name}"
    a(f"s_cmp_ge_u32 s2, 254\ns_cbranch_scc1 {E}_end")
    ts("start")
    a("s_load_dwordx16 s[8:23], s[0:1], 0\ns_load_dwordx2 s[24:25], s[0:1], 80")
    a("v_lshrrev_b32 v1, 6, v0\nv_and_b32 v2, 63, v0\nv_readfirstlane_b32 s3, v1")
    a(f"""s_mul_i32 s4, s2, 6400
v_lshl_add_u32 v3, v0, 4, s4
v_mov_b32 v5, {BIG}
v_cmp_gt_u32 s[26:27], 400, v0""".replace("v_cmp_gt_u32 s[26:27], 400, v0","v_cmp_gt_u32 vcc, 400, v0\ns_mov_b64 s[26:27], vcc"))
    a(f"""v_cndmask_b32 v3, v5, v3, vcc
v_lshlrev_b32 v22, 2, v0
v_mov_b32 v24, 0
ds_write_b32 v22, v24 offset:{L_CNT}
s_mov_b32 s34, 1600000
s_mov_b32 s35, 0x20000
s_mov_b32 s38, 1600000
s_mov_b32 s39, 0x20000
s_cmp_ge_u32 s2, 250
s_waitcnt lgkmcnt(0)
s_cbranch_scc1 {E}_prep
s_mov_b32 s32, s16
s_mov_b32 s33, s17
s_mov_b32 s36, s14
s_mov_b32 s37, s15
buffer_load_dwordx4 v[8:11], v3, s[32:35], 0 offen
buffer_load_dwordx4 v[12:15], v3, s[36:39], 0 offen
s_barrier""")
    srd(a, 28, 24, WS_USED)
    srd(a, 40, 10, 150000)
    srd(a, 44, 8, 6400000)
    srd(a, 48, 18, 32768, 128*256)
    PF1=opt.get('PF1')
    if PF1 or not DM: srd(a, 52, 12, 12800000)
    def pf1(pos):
        if PF1==pos: a(f"s_mul_i32 s57, s2, 51200\nv_lshlrev_b32 v47, 7, v0\nv_cndmask_b32 v47, v5, v47, s[26:27]\nbuffer_load_dword v47, v47, s[52:55], s57 offen")
    a(f"""v_lshrrev_b32 v17, 4, v2
s_and_b32 s5, s3, 3
s_lshl_b32 s5, s5, 2
v_add_u32 v18, s5, v17
v_and_b32 v19, 15, v2
v_xor_b32 v18, v18, v19
v_lshlrev_b32 v18, 4, v18
v_lshl_add_u32 v18, v17, 8, v18
s_mul_i32 s6, s2, 25600
s_lshl_b32 s7, s3, 10
s_add_u32 s6, s6, s7
s_cmp_lg_u32 s3, 0
s_cbranch_scc1 {E}_nohx
s_add_u32 s56, s6, {24*1024}
s_mov_b32 m0, {L_H+24*1024}
s_nop 0
buffer_load_dwordx4 v18, s[44:47], s56 offen lds""")
    a.label(f"{E}_nohx")
    for m in range(3):
        a(f"s_add_u32 m0, s7, {L_H+m*8192}\ns_add_u32 s56, s6, {m*8192}\nbuffer_load_dwordx4 v18, s[44:47], s56 offen lds")
    a(f"""v_lshlrev_b32 v20, 2, v17
v_xor_b32 v20, v20, v19
v_lshlrev_b32 v20, 4, v20
v_lshl_add_u32 v20, v17, 8, v20""")
    def wdma():
        for m in range(4):
            a(f"s_add_u32 m0, s7, {L_W+m*8192}\ns_add_u32 s56, s7, {m*8192}\nbuffer_load_dwordx4 v20, s[48:51], s56 offen lds")
    a(f"""s_lshr_b32 s59, s3, 1
s_and_b32 s60, s3, 1
v_and_b32 v48, 31, v2
v_lshrrev_b32 v49, 5, v2
v_xor_b32 v50, v49, v19
v_lshlrev_b32 v50, 4, v50
v_lshl_add_u32 v50, v48, 8, v50
s_lshl_b32 s56, s59, 13
s_add_u32 s56, s56, {L_H}
v_add_u32 v50, s56, v50""")
    a(f"""v_bfe_u32 v51, v2, 2, 2
v_lshl_add_u32 v52, v49, 3, v51
v_lshlrev_b32 v52, 8, v52
v_and_b32 v53, 1, v17
v_lshlrev_b32 v53, 1, v53
v_bfe_u32 v54, v2, 1, 1
v_add_u32 v53, v53, v54
v_lshl_add_u32 v52, v53, 4, v52
v_and_b32 v54, 1, v2
v_lshl_add_u32 v52, v54, 3, v52
v_add_u32 v52, {L_W}, v52
s_lshl_b32 s56, s60, 1
v_xor_b32 v53, s56, v51
v_xor_b32 v54, 1, v53
v_lshl_add_u32 v53, v53, 6, v52
v_lshl_add_u32 v54, v54, 6, v52""")
    a(f"""s_mul_i32 s56, s2, 25600
s_lshl_b32 s57, s59, 13
s_add_u32 s56, s56, s57
s_lshl_b32 s57, s60, 7
s_add_u32 s56, s56, s57
v_lshlrev_b32 v56, 2, v48
v_lshl_add_u32 v56, v49, 10, v56
v_add_u32 v56, s56, v56
v_lshlrev_b32 v21, 4, v2
v_lshlrev_b32 v44, 4, v0
v_mov_b32 v25, 1
s_mov_b32 s58, 42800
s_mov_b32 s62, {LOG2E}
s_mov_b32 s63, {LOG2E}
s_mov_b32 s64, 0x7fff0000
s_movk_i32 s65, 4096
s_mov_b32 s66, 0xffff""")
    if not DM: a("s_mul_i32 s57, s2, 51200\ns_add_u32 s57, s57, s7")
    ts("issued")
    PB=192; SH=200
    def eadma(m):
        a(f"s_add_u32 m0, s7, {L_EA+m*8192}\ns_add_u32 s56, s57, {m*8192}\nbuffer_load_dwordx4 v21, s[52:55], s56 offen lds")
    G=[int(x) for x in opt.get('G','0011')]
    def gat(pos):
        for i in range(4):
            if G[i]==pos: a(f"buffer_load_dwordx2 v[{PB+2*i}:{PB+2*i+1}], v{PB+2*i}, s[40:43], 0 offen")
    def ng(pos): return sum(1 for g in G if g<=pos)
    a("s_waitcnt vmcnt(4)")
    ts("dst")
    for i in range(4):
        d=8+i; b=26+i
        a(f"v_mul_u32_u24 v{b}, s58, v{d}\nv_lshrrev_b32 v{b}, 22, v{b}\nv_lshlrev_b32 v{36+i}, 2, v{b}")
    a("s_mov_b64 exec, s[26:27]")
    for i in range(4): a(f"ds_add_rtn_u32 v{40+i}, v{36+i}, v25 offset:{L_CNT}")
    a("s_mov_b64 exec, -1")
    wdma()
    a("s_waitcnt vmcnt(7)")
    for i in range(4):
        a(f"v_mul_u32_u24 v{PB+2*i}, 6, v{12+i}\nv_and_b32 v{PB+2*i}, -4, v{PB+2*i}")
    assert DM
    NEA=0
    if not DM:
        for m in range(6): eadma(m)
        a(f"s_cmp_ge_u32 s3, 2\ns_cbranch_scc1 {E}_noex"); eadma(6); a.label(f"{E}_noex")
        NEA=6
    def meta(a):
        for i in range(4):
            d=8+i; s=12+i; b=26+i; x=204+2*(i&1); y=x+1
            a(f"""v_mul_u32_u24 v{x}, 98, v{b}
v_sub_u32 v{d}, v{d}, v{x}
v_mul_u32_u24 v{x}, 147, v{d}
v_lshrrev_b32 v{x}, 10, v{x}
v_mul_u32_u24 v{y}, 7, v{x}
v_sub_u32 v{d}, v{d}, v{y}
v_add_u32 v{y}, 5, v{x}
v_lshrrev_b32 v{y}, 4, v{y}
v_add_u32 v{x}, v{x}, v{y}
v_lshl_add_u32 v{x}, v{x}, 3, v{d}
v_and_b32 v{SH+i}, 1, v{s}
v_lshl_or_b32 v{s}, v{x}, 24, v{s}
v_and_b32 v{d}, 3, v{d}
v_lshl_or_b32 v{s}, v{d}, 20, v{s}
v_lshlrev_b32 v{SH+i}, 4, v{SH+i}""")
    M=cap(meta)
    npre=int(opt.get('MP','15'))
    for l in M[:npre]: a(l)
    M=M[npre:]
    a("s_waitcnt lgkmcnt(0)\ns_barrier")
    ts("cnt")
    a(f"ds_read_b128 v[32:35], v21 offset:{L_CNT}")
    gat(0)
    for l in M[:15]: a(l)
    M=M[15:]
    a(f"""s_waitcnt lgkmcnt(0)
v_add_u32 v6, v32, v33
v_add_u32 v7, v6, v34
v_add_u32 v31, v7, v35
v_mov_b32 v30, v31""")
    M=ilv(a, [M.pop(0)]+cap(lambda t: wave_scan(t,31)), M, [0,2,2,2,2,2,0])
    a(f"""v_sub_u32 v60, v31, v30
v_add_u32 v61, v60, v32
v_add_u32 v62, v60, v6
v_add_u32 v63, v60, v7
ds_write_b128 v21, v[60:63] offset:{L_START}""")
    for i in range(4): a(f"ds_read_b32 v{56+i+1 if False else 208+i}, v{36+i} offset:{L_START}")
    for l in M: a(l)
    a(f"v_lshlrev_b32 v45, 7, v0\nv_add_u32 v46, {DBIAS}, v22\ns_waitcnt lgkmcnt(0)\ns_mov_b64 exec, s[26:27]")
    for i in range(4):
        a(f"""v_add_u32 v{40+i}, v{40+i}, v{208+i}
v_mul_u32_u24 v{36+i}, 12, v{40+i}
ds_write_b32 v{36+i}, v{12+i} offset:{L_REC}""")
        if DM:
            a(f"v_sub_u32 v{40+i}, v46, v{40+i}\nv_add_lshl_u32 v{40+i}, v{40+i}, {i}, 16")
        else:
            a(f"v_lshlrev_b32 v30, 1, v{40+i}\nv_add_u32 v31, {32*i}, v45\nds_write_b16 v30, v31 offset:{L_INV}")
    a("s_mov_b64 exec, -1")
    gat(1)
    a(f"s_waitcnt vmcnt({ng(1)}) lgkmcnt(0)\ns_barrier")
    ts("hW")
    pf1('h')
    if PF1=='h': NEA+=1
    a(f"s_cmp_lg_u32 s3, 7\ns_cbranch_scc1 {E}_notab")
    for i in range(4): a(f"v_lshl_or_b32 v{32+i}, v{32+i}, 16, v{60+i}")
    a(f"""v_lshrrev_b32 v30, 1, v2
s_movk_i32 s56, 8000
v_mul_u32_u24 v30, s56, v30
v_and_b32 v31, 1, v2
v_lshl_add_u32 v30, v31, 4, v30
s_lshl_b32 s56, s2, 5
s_add_u32 s56, s56, {OFF_TAB}
buffer_store_dwordx4 v[32:35], v30, s[28:31], s56 offen {ST}""")
    a.label(f"{E}_notab")
    gat(2)
    if not DM:
        a(f"v_lshrrev_b32 v46, 1, v0\nv_lshlrev_b32 v46, 1, v46")
        for i in range(7): a(f"ds_read_u16 v{204+i}, v46 offset:{L_INV+i*512}")
    for k in range(8):
        if k == 0: a(f"ds_read_b128 v[64:67], v50")
        else: a(f"v_xor_b32 v55, {32*k}, v50\nds_read_b128 v[{64+4*k}:{67+4*k}], v55")
        for z in range(2):
            for u in range(2):
                r = 96+8*k+4*z+2*u
                a(f"ds_read_b64_tr_b16 v[{r}:{r+1}], v{53+z} offset:{k*4096+u*1024}")
        if k >= 2:
            kk = k-2
            a("s_waitcnt lgkmcnt(10)")
            for z in range(2):
                D = 160+16*z; C = f"v[{D}:{D+15}]" if kk else "0"
                a(f"v_mfma_f32_32x32x16_bf16 v[{D}:{D+15}], v[{64+4*kk}:{67+4*kk}], v[{96+8*kk+4*z}:{99+8*kk+4*z}], {C}")
    for kk in (6,7):
        a(f"s_waitcnt lgkmcnt({5 if kk==6 else 0})")
        for z in range(2):
            D = 160+16*z
            a(f"v_mfma_f32_32x32x16_bf16 v[{D}:{D+15}], v[{64+4*kk}:{67+4*kk}], v[{96+8*kk+4*z}:{99+8*kk+4*z}], v[{D}:{D+15}]")
    ts("gemm")
    gat(3)
    a(f"""s_add_u32 s56, s2, 1
s_mul_i32 s56, s56, 25600
s_mov_b32 s32, s24
s_mov_b32 s33, s25
s_mov_b32 s34, s56
s_mov_b32 s35, 0x20000""")
    if not DM:
        a(f"v_and_b32 v55, 1, v0\nv_lshlrev_b32 v55, 4, v55\nv_add_u32 v55, {L_EA}, v55")
        for i in range(7): a(f"v_add_u32 v{204+i}, v{204+i}, v55")
    for r in range(0,16,2):
        a(f"v_pk_mul_f32 v[{160+r}:{161+r}], v[{160+r}:{161+r}], s[62:63]\nv_pk_mul_f32 v[{176+r}:{177+r}], v[{176+r}:{177+r}], s[62:63]")
    for r in range(16):
        lo=160+r; hi=176+r
        a(f"""v_cvt_pk_bf16_f32 v{lo}, v{lo}, v{hi}
v_and_b32 v{hi}, 0x7fffffff, v{hi}
v_add_u32 v{hi}, 0x8000, v{hi}
v_sub_u32_sdwa v{hi}, v{hi}, v{lo} clamp dst_sel:DWORD dst_unused:UNUSED_PAD src0_sel:DWORD src1_sel:WORD_0
v_bfi_b32 v{lo}, s64, v{hi}, v{lo}""")
        q = r>>2
        a(f"buffer_store_dword v{lo}, v56, s[32:35], {'s65' if q>>1 else '0'} offen offset:{(r&3)*256+(q&1)*2048} {ST}")
    pf1('q')
    if PF1=='q': NEA+=1
    ts("qst")
    a(f"s_waitcnt vmcnt({16+NEA})\ns_mov_b64 exec, s[26:27]")
    for i in range(4):
        lo=PB+2*i; hi=lo+1
        a(f"v_alignbit_b32 v{lo}, v{hi}, v{lo}, v{SH+i}\nv_lshrrev_b32 v{hi}, v{SH+i}, v{hi}")
        if DM: a(f"v_and_or_b32 v{hi}, v{hi}, s66, v{40+i}")
        else: a(f"v_and_b32 v{hi}, s66, v{hi}")
        a(f"ds_write2_b32 v{36+i}, v{lo}, v{hi} offset0:1 offset1:2")
    a("s_mov_b64 exec, -1")
    a(f"s_mul_i32 s56, s2, 19200\ns_add_u32 s56, s56, {OFF_REC}\nv_cmp_gt_u32 vcc, 176, v0\nv_add_u32 v45, 16384, v44\nv_cndmask_b32 v45, v5, v45, vcc\ns_add_u32 s57, s56, 8192")
    if DM: a("s_waitcnt lgkmcnt(0)\ns_barrier")
    else: a("s_waitcnt vmcnt(16) lgkmcnt(0)\ns_barrier")
    ts("rec")
    for i in range(3): a(f"ds_read_b128 v[{8+4*i}:{11+4*i}], v44 offset:{L_REC+i*8192}")
    if not DM:
        for i in range(6): a(f"ds_read_b128 v[{64+4*i}:{67+4*i}], v{204+i}")
    n=0 if DM else 6
    a(f"s_waitcnt lgkmcnt({n+2})\nbuffer_store_dwordx4 v[8:11], v44, s[28:31], s56 offen {ST}")
    a(f"s_waitcnt lgkmcnt({n+1})\nbuffer_store_dwordx4 v[12:15], v44, s[28:31], s57 offen {ST}")
    a(f"s_waitcnt lgkmcnt({n})\nbuffer_store_dwordx4 v[16:19], v45, s[28:31], s56 offen {ST}")
    if not DM:
        a(f"s_mul_i32 s56, s2, 51200\ns_add_u32 s56, s56, {OFF_EAP}")
        for i in range(6):
            a(f"s_add_u32 s57, s56, {i*8192}\ns_waitcnt lgkmcnt({5-i})\nbuffer_store_dwordx4 v[{64+4*i}:{67+4*i}], v44, s[28:31], s57 offen {ST}")
        a(f"s_cmp_ge_u32 s3, 2\ns_cbranch_scc1 {E}_noe7")
        a(f"ds_read_b128 v[88:91], v210\ns_add_u32 s57, s56, {6*8192}\ns_waitcnt lgkmcnt(0)\nbuffer_store_dwordx4 v[88:91], v44, s[28:31], s57 offen {ST}")
        a.label(f"{E}_noe7")
    pf1('e')
    if PF1: a("s_waitcnt vmcnt(0)")
    if opt.get('DLY1'):
        a(f"s_movk_i32 s90, {opt['DLY1']}"); a.label("L_k1_dly")
        for i in range(16): a("v_exp_f32 v200, v200")
        a("s_sub_u32 s90, s90, 1\ns_cbranch_scc0 L_k1_dly")
    ts("east"); ts.dump()
    a("s_endpgm")
    a.label(f"{E}_prep")
    srd(a, 28, 24, WS_USED)
    a(f"""v_and_b32 v48, 31, v2
v_lshrrev_b32 v49, 5, v2
v_lshlrev_b32 v21, 4, v2
s_cmp_eq_u32 s2, 253
s_cbranch_scc1 {E}_small""")
    a("""s_barrier
s_cmp_eq_u32 s2, 250
s_cselect_b32 s32, s18, s22
s_cselect_b32 s33, s19, s23
s_mov_b32 s34, 65536
s_mov_b32 s35, 0x20000
s_cmp_eq_u32 s2, 252
s_cselect_b32 s4, 32768, 0
s_lshl_b32 s5, s3, 12
s_add_u32 s4, s4, s5
s_mov_b32 m0, s5
s_nop 0""")
    for m in range(4): a(f"buffer_load_dwordx4 v21, s[32:35], s4 offen offset:{m*1024} lds")
    a(f"""s_and_b32 s6, s3, 3
s_lshl_b32 s6, s6, 13
s_lshr_b32 s7, s3, 2
s_lshl_b32 s7, s7, 7
s_add_u32 s6, s6, s7
s_cmp_eq_u32 s2, 250
s_cselect_b32 s56, 1, 2
s_cselect_b32 s57, 64, 2
s_cmp_eq_u32 s2, 252
s_cselect_b32 s58, 10, 11
v_lshlrev_b32 v50, s56, v48
v_lshlrev_b32 v51, s58, v49
v_add3_u32 v50, v50, v51, s6
v_add_u32 v51, s57, v50
s_sub_u32 s59, s2, 250
s_lshl_b32 s59, s59, 15
s_add_u32 s59, s59, s5
s_add_u32 s59, s59, {OFF_WF}
s_mov_b32 s60, 0x05040100
s_waitcnt vmcnt(0)
s_barrier
s_cmp_eq_u32 s2, 252
s_cbranch_scc1 {E}_w2""")
    def frags(w2):
        for m in range(4):
            for e in range(8):
                eo = ((e&3)+8*(e>>2)) if w2 else e
                a(f"ds_read_u16 v{64+8*m+e}, v{50+(m&1)} offset:{((m>>1)*16+eo)*256}")
            a("s_waitcnt lgkmcnt(0)")
            for d in range(4): a(f"v_perm_b32 v{64+8*m+d}, v{64+8*m+2*d+1}, v{64+8*m+2*d}, s60")
    frags(False)
    for m in range(4): a(f"buffer_store_dwordx4 v[{64+8*m}:{67+8*m}], v21, s[28:31], s59 offen offset:{m*1024}")
    a("s_endpgm")
    a.label(f"{E}_w2")
    frags(True)
    a(f"""s_and_b32 s4, s3, 1
s_bitcmp1_b32 s3, 1
s_cbranch_scc1 {E}_w2b
s_lshl_b32 s4, s4, 13
s_add_u32 s4, s4, s7
s_add_u32 s4, s4, {OFF_WF+WF_W2}
s_add_u32 s6, s4, 4096
v_lshlrev_b32 v22, 2, v48
v_lshl_add_u32 v22, v49, 10, v22""")
    for m in range(4):
        for d in range(4): a(f"buffer_store_dword v{64+8*m+d}, v22, s[28:31], {'s6' if m>>1 else 's4'} offen offset:{(m&1)*2048+d*256}")
    a("s_endpgm")
    a.label(f"{E}_w2b")
    a(f"s_lshl_b32 s4, s4, 12\ns_lshl_b32 s7, s7, 6\ns_add_u32 s4, s4, s7\ns_add_u32 s4, s4, {OFF_WF+WF_W2+16384}")
    for m in range(4): a(f"buffer_store_dwordx4 v[{64+8*m}:{67+8*m}], v21, s[28:31], s4 offen offset:{m*1024}")
    a("s_endpgm")
    a.label(f"{E}_small")
    srd(a, 32, 18, 17*256, 256*256)
    srd(a, 36, 20, 256)
    a(f"""s_and_b32 s4, s3, 3
s_lshl_b32 s5, s4, 6
v_lshl_add_u32 v50, v48, 1, s5
s_mov_b32 s62, {LOG2E}
s_cmp_ge_u32 s3, 4
s_cbranch_scc1 {E}_wdi
v_lshl_add_u32 v51, v49, 11, v50""")
    for e in range(8): a(f"buffer_load_ushort v{64+e}, v51, s[32:35], 0 offen offset:{256+e*256}")
    a("""v_and_b32 v52, 0x38, v2
v_lshlrev_b32 v52, 2, v52
v_bfe_u32 v53, v2, 1, 1
v_lshl_add_u32 v52, v53, 4, v52
v_bfe_u32 v53, v2, 2, 1
v_lshl_add_u32 v52, v53, 3, v52
v_and_b32 v53, 1, v2
v_lshl_add_u32 v52, v53, 2, v52
buffer_load_dword v72, v52, s[36:39], 0 offen
s_waitcnt vmcnt(0)""")
    for e in range(8): a(f"v_lshlrev_b32 v{64+e}, 16, v{64+e}\nv_mul_f32 v{64+e}, s62, v{64+e}")
    for d in range(4): a(f"v_cvt_pk_bf16_f32 v{64+d}, v{64+2*d}, v{65+2*d}")
    a(f"""s_lshl_b32 s5, s4, 10
s_add_u32 s5, s5, {OFF_WF+WF_WA}
buffer_store_dwordx4 v[64:67], v21, s[28:31], s5 offen
v_lshlrev_b32 v22, 2, v2
s_mov_b32 s5, {OFF_WF+WF_WX}
buffer_store_dword v72, v22, s[28:31], s5 offen
s_endpgm""")
    a.label(f"{E}_wdi")
    a(f"""buffer_load_ushort v64, v50, s[32:35], 0 offen
v_cmp_gt_u32 vcc, 32, v2
v_lshlrev_b32 v22, 2, v2
s_lshl_b32 s5, s4, 8
s_add_u32 s5, s5, {OFF_WF+WF_WDI}
s_waitcnt vmcnt(0)
v_lshlrev_b32 v64, 16, v64
v_mul_f32 v64, s62, v64
v_cvt_pk_bf16_f32 v64, 0, v64
v_cndmask_b32 v64, 0, v64, vcc
buffer_store_dword v64, v22, s[28:31], s5 offen""")
    a.label(f"{E}_end")
    a("s_endpgm")
    gen_k1.names=ts.names
    return a.lines, 212, K1_LDS
```

```python
from asmlib import *
from gen_k1b import *
NTILE=69; CAP=320; RPS=1296; AS=8960; AU=AS//256
TB=(0,19,38,53); TCAP=(544,544,416,448)
L_S=0; L_PA=32768; L_POSD=36864; L_PD=38912; L_CNT=40960; L_WX=41216; L_IDX=41472
L_RP=L_IDX; L_WD=L_RP+8*RPS; L_W1=L_IDX+7*AS; L_MI=L_W1+32768; K2_LDS=L_MI+98*256
assert L_WD+32768 <= L_W1 and K2_LDS <= 163840 and L_RP+8*RPS < 65536 and L_MI%256==0 and NTILE*128<=AS
vT=192; vMin=193; vTB=194; vCap=195; vBP=196; vL31=197; vC0p=198; vC1p=199; vM31=248; vBig=249; vFk=250
rC0=16; rC1=24; rE1=32; rST=40
def hkey(row):
    g=row//7; n=row-7*g; gi=g+(g>=11); return (n&3)|((gi&1)<<2)|((n>>2)<<3)
W2ROW0=(OFF_WF+WF_W2)//256
QB=(16,32); Z0=48; Z1=64; EE=80; M0=96; M1=104; SF=112; TT=120; WA=152; PP=160; F23=168; SEL=176; EA=(192,248); PA=196; YY=200; ZQ=252
vIdx=232; vX=233; vRC=(234,236); vE=238; vSa=239; vSbase=240; vSrd=(241,242); vR2=243; vMI=245; vPD=246; vWX=247
vL4=1; vLane=2; vA=3; vOutA=4; vOutB=5
REC=80; POSR=100; RANK=6; CA=11
def R(b,n): return f"v[{b}:{b+n-1}]"
def S2(b): return f"s[{b}:{b+1}]"
def S4(b): return f"s[{b}:{b+3}]"
def mfma(a,D,A,B,C): a(f"v_mfma_f32_32x32x16_bf16 {R(D,16)}, {R(A,4)}, {R(B,4)}, {R(C,16) if C is not None else 0}")
sW=3; sQ=4; sWS=16; sHH=20; sEA=24; pOUT=28; pWS=32; sTabO=34; sMore=35; sOUT=36; sPOS=40
sB=44; sH=45; sTeam=46; sRow0=47; sWin=48; sCap=49; sFirst=50; sN=51; sRPb=52; sCnt=53; sD1=54; sD2=55; sD3=56; sNT=57
sSwap=58; sLo=60; sMIm=62; sL2E=64; sOne=66; sHi16=68; sKlo=69; sKhi=70; sW2=71; sV=72
t0=82; t1=83; t2=84; t3=85; tp=86; u0=88; u1=89; u2=90; sBias=91; sTBb=92

def gen_k2(name, opt):
    a = Asm(); ts=TS(a, opt.get("TS"), [94,96,98,100,8,10,12,14,72,74,76,78,80], 1, pWS, sW, vLane, sPOS, 6); E="L_k2"
    if opt.get('TSN'): ts.only=opt['TSN'].split(',')
    SAFE=opt.get('SAFE'); ST=opt.get('ST2',''); DM=opt.get('DM')
    outl=[]
    a(f"s_cmp_ge_u32 s2, 256\ns_cbranch_scc1 {E}_end")
    ts("start")
    a(f"s_load_dwordx2 {S2(pWS)}, s[0:1], 80\ns_load_dwordx8 s[8:15], s[0:1], 0\ns_load_dwordx4 {S4(pOUT)}, s[0:1], 64")
    def tabaddr():
        a(f"""v_lshrrev_b32 v6, 1, v0
v_mov_b32 v15, {BIG}
v_cmp_gt_u32 vcc, 250, v6
v_lshlrev_b32 v7, 5, v6
v_cndmask_b32 v7, v15, v7, vcc""")
    a(f"""v_lshrrev_b32 v1, 6, v0
v_and_b32 v{vLane}, 63, v0
v_readfirstlane_b32 s{sW}, v1
s_and_b32 s{sB}, s2, 7
s_lshl_b32 s{sB}, s{sB}, 5
s_lshr_b32 s{t0}, s2, 3
s_add_u32 s{sB}, s{sB}, s{t0}
s_lshr_b32 s{t0}, s{sB}, 3
s_mul_i32 s{t0}, s{t0}, 8000
s_and_b32 s{t1}, s{sB}, 7
s_lshl_b32 s{t1}, s{t1}, 2
s_add_u32 s{t0}, s{t0}, s{t1}
s_add_u32 s{sTabO}, s{t0}, {OFF_TAB}
s_mov_b32 s{sWS+2}, {WS_USED}
s_mov_b32 s{sWS+3}, 0x20000""")
    tabaddr()
    a(f"""v_lshlrev_b32 v8, 2, v0
v_mov_b32 v10, 0
ds_write_b32 v8, v10 offset:{L_PD}
s_waitcnt lgkmcnt(0)
s_mov_b32 s{sWS}, s{pWS}
s_mov_b32 s{sWS+1}, s{pWS+1}
buffer_load_dword v9, v7, {S4(sWS)}, s{sTabO} offen""")
    srd(a, sHH, 8, 6400000)
    srd(a, sPOS, 10, 150000)
    srd(a, sEA, 12, 12800000)
    srd(a, sOUT, pOUT, 6400000)
    a(f"""s_and_b32 s{sH}, s{sW}, 1
s_lshr_b32 s{sTeam}, s{sW}, 1
s_mul_i32 s{sRow0}, s{sTeam}, 28
s_min_u32 s{sRow0}, s{sRow0}, 77
s_mov_b32 s{sWin}, 0
s_movk_i32 s{sCap}, {CAP}
s_mov_b32 s{sFirst}, 1
s_mov_b32 s{sLo}, -1
s_mov_b32 s{sLo+1}, 0
s_mov_b32 s{sMIm}, 0x01111111
s_mov_b32 s{sMIm+1}, 0x01111111
s_mov_b32 s{sHi16}, 0xffff0000
s_mov_b32 s{sL2E}, {LOG2E}
s_mov_b32 s{sL2E+1}, {LOG2E}
s_mov_b32 s{sOne}, 1.0
s_mov_b32 s{sOne+1}, 1.0
s_mov_b32 s{sKlo}, 0xbf80
s_mov_b32 s{sKhi}, 0xbf800000
s_mul_i32 s{sRPb}, s{sW}, {RPS}
s_lshl_b32 s{t0}, s{sH}, 7
s_add_u32 s{sQ}, s{pWS}, s{t0}
s_addc_u32 s{sQ+1}, s{pWS+1}, 0
s_and_b32 s{sQ+1}, s{sQ+1}, 0xffff
s_or_b32 s{sQ+1}, s{sQ+1}, 0x80000000
s_mov_b32 s{sQ+2}, 6400000
s_mov_b32 s{sQ+3}, 0xC00000
s_lshl_b32 s{sW2}, s{sH}, 13
s_add_u32 s{sW2}, s{sW2}, {OFF_WF+WF_W2+16384}""")
    if SAFE: a("s_mov_b32 s93, 0")
    a(f"s_cmp_lt_u32 s{sW}, 4\ns_cbranch_scc1 {E}_lo")
    if opt.get('PRIO','1')=='1': a("s_setprio 1")
    a.label(f"{E}_lo")
    a.label(f"{E}_round")
    vm=['tab']
    def V(tag, text):
        for l in text.split("\n"):
            a(l)
            if l.startswith('buffer_'): vm.append(tag)
    def younger(tag):
        return len(vm)-1-max(i for i,t in enumerate(vm) if t==tag)
    WDP=opt.get('WDP','0'); SMP=opt.get('SMP','2'); W1P=opt.get('W1P','3')
    def wd():
        a(f"s_lshl_b32 s{t3}, s{sW}, 12\ns_add_u32 m0, s{t3}, {L_WD}\ns_add_u32 s{t0}, s{t3}, {OFF_WF+WF_WD}")
        for m in range(4): V('wd', f"buffer_load_dwordx4 v14, {S4(sWS)}, s{t0} offen offset:{m*1024} lds")
    def w1(v):
        a(f"s_lshl_b32 s{t3}, s{sW}, 12\ns_add_u32 m0, s{t3}, {L_W1}\ns_add_u32 s{t0}, s{t3}, {OFF_WF+WF_W1}")
        for m in range(4): V('w1', f"buffer_load_dwordx4 v{v}, {S4(sWS)}, s{t0} offen offset:{m*1024} lds")
    def small():
        V('sm', f"""s_lshl_b32 s{t2}, s{sH}, 9
s_add_u32 s{t2}, s{t2}, {OFF_WF+WF_WDI}
buffer_load_dword v{ZQ+2}, v{vL4}, {S4(sWS)}, s{t2} offen
buffer_load_dword v{ZQ+3}, v{vL4}, {S4(sWS)}, s{t2} offen offset:256""")
        V('sm2', f"""s_lshl_b32 s{t2}, s{sH}, 11
s_add_u32 s{t2}, s{t2}, {OFF_WF+WF_WA}
buffer_load_dwordx4 {R(WA,4)}, v14, {S4(sWS)}, s{t2} offen
buffer_load_dwordx4 {R(WA+4,4)}, v14, {S4(sWS)}, s{t2} offen offset:1024
s_mov_b32 m0, {L_WX}
s_mov_b32 s{t0}, {OFF_WF+WF_WX}
buffer_load_dword v{vL4}, {S4(sWS)}, s{t0} offen lds""")
    PFE=opt.get('PFE'); PFT=opt.get('PFT'); PFQ=opt.get('PFQ')
    def pfe():
        V('pfe', f"""s_mul_i32 s{t0}, s2, {391*128}
v_lshlrev_b32 v{vE}, 7, v0
v_cmp_gt_u32 vcc, 391, v0
v_cndmask_b32 v{vE}, v15, v{vE}, vcc
buffer_load_dword v{vE}, v{vE}, {S4(sEA)}, s{t0} offen {opt.get('PFEP','')}""")
    def pfq(n):
        a(f"s_lshr_b32 s{t0}, s2, 3\ns_mul_i32 s{t0}, s{t0}, {n*512*128}\nv_lshlrev_b32 v{vRC[1]}, 7, v0")
        for k in range(n):
            V('pfq', f"buffer_load_dword v{vRC[0]}, v{vRC[1]}, {S4(sWS)}, s{t0} offen")
            if k<n-1: a(f"s_add_u32 s{t0}, s{t0}, {512*128}")
    def at(pos, v=14):
        if WDP==pos: wd()
        if SMP==pos: small()
        if W1P==pos: w1(v)
        if PFE==pos: pfe()
        if PFQ and PFQ[0]==pos: pfq(int(PFQ[1:]))
    KT=[[sum(hkey(32*m+4*w+q)<<(4*q+16*(w&1)) for w in (2*w2,2*w2+1) for q in range(4)) for w2 in range(4)] for m in range(3)]
    a(f"""v_lshlrev_b32 v14, 4, v{vLane}
v_lshlrev_b32 v{vL4}, 2, v{vLane}
v_lshrrev_b32 v7, 4, v{vLane}
v_and_b32 v8, 15, v{vLane}
s_lshl_b32 s{t0}, s{sH}, 4
v_lshl_add_u32 v10, v7, 2, s{t0}
v_lshlrev_b32 v11, 8, v7""")
    for m in range(3): a(f"s_mov_b32 s{u0+m}, {hex(KT[m][0])}")
    for w2 in range(1,4):
        a(f"s_cmp_eq_u32 s{sTeam}, {w2}")
        for m in range(3): a(f"s_cselect_b32 s{u0+m}, {hex(KT[m][w2])}, s{u0+m}")
    a(f"s_mul_i32 s{t1}, s{sB}, {98*256}\ns_lshl_b32 s{t3}, s{sW}, 10\ns_add_u32 s{t2}, s{t1}, s{t3}")
    for m in range(3):
        a(f"v_bfe_u32 v{16+m}, s{u0+m}, v10, 4\nv_xor_b32 v{16+m}, v{16+m}, v8\nv_lshl_add_u32 v{16+m}, v{16+m}, 4, v11")
        V('h', f"s_add_u32 m0, s{t3}, {L_MI+m*8192}\ns_add_u32 s{t0}, s{t2}, {m*8192}\nbuffer_load_dwordx4 v{16+m}, {S4(sHH)}, s{t0} offen lds")
    assert hkey(96)==9 and hkey(97)==10
    V('h', f"""v_add_u32 v10, 9, v7
v_xor_b32 v10, v10, v8
v_lshl_add_u32 v19, v10, 4, v11
s_add_u32 s{t0}, s{t1}, {96*256}
s_mov_b32 m0, {L_MI+24*1024}
s_mov_b64 exec, {S2(sLo)}
buffer_load_dwordx4 v19, {S4(sHH)}, s{t0} offen lds
s_mov_b64 exec, -1""")
    V('h', f"""v_lshrrev_b32 v7, 3, v0
s_mul_i32 s{t1}, s{sB}, 98
v_sub_u32 v7, v0, v7
v_cmp_lt_u32 vcc, 95, v0
v_add_u32 v7, s{t1}, v7
v_subrev_u32 v8, 7, v7
v_cndmask_b32 v7, v7, v8, vcc
v_cmp_gt_u32 vcc, 120, v0
v_and_b32 v22, 1, v7
v_mul_u32_u24 v7, 6, v7
v_lshlrev_b32 v22, 4, v22
v_and_b32 v7, -4, v7
v_cndmask_b32 v7, v15, v7, vcc
buffer_load_dwordx2 v[20:21], v7, {S4(sPOS)}, 0 offen""")
    at('0')
    def grp_base(a):
        a(f"""v_and_b32 v{vL31}, 31, v{vLane}
v_lshrrev_b32 v47, 5, v{vLane}""")
    def grp_a(a):
        a(f"""v_lshrrev_b32 v40, 4, v{vL31}
v_bfe_u32 v41, v{vL31}, 2, 1
v_lshl_add_u32 v40, v40, 1, v41
v_and_b32 v41, 3, v{vL31}
v_bfe_u32 v42, v{vL31}, 3, 1
v_lshl_add_u32 v41, v42, 2, v41
v_mul_u32_u24 v43, 7, v40
v_add3_u32 v43, v43, v41, s{sRow0}
v_min_u32 v43, 97, v43
v_and_b32 v44, 15, v{vL31}
v_xor_b32 v44, v44, v47
v_lshlrev_b32 v44, 4, v44
v_lshl_add_u32 v43, v43, 8, v44
v_add_u32 v{vA}, {L_MI}, v43
s_lshl_b32 s{u0}, s{sW}, 12
v_lshlrev_b32 v40, 4, v40
v_lshl_add_u32 v40, v41, 1, v40
v_add_u32 v{vSbase}, s{u0}, v40
v_bfe_u32 v40, v{vL31}, 2, 2
v_xor_b32 v40, v40, v47
v_lshlrev_b32 v40, 4, v40
v_lshl_add_u32 v40, v{vL31}, 6, v40
v_add_u32 v{vSrd[0]}, s{u0}, v40
v_xor_b32 v{vSrd[1]}, 32, v{vSrd[0]}
v_mov_b32 v{vSa}, v{vSbase}""")
    def grp_mi(a):
        a(f"""v_lshrrev_b32 v40, 2, v{vL31}
v_and_b32 v41, 3, v40
v_lshrrev_b32 v42, 2, v40
v_lshl_add_u32 v41, v42, 3, v41
s_lshl_b32 s{u0}, s{sH}, 3
v_xor_b32 v41, s{u0}, v41
v_xor_b32 v41, v41, v47
v_lshlrev_b32 v41, 4, v41
s_add_u32 s{u0}, s{sRow0}, {L_MI//256}
v_add_u32 v40, s{u0}, v40
v_lshl_add_u32 v{vMI}, v40, 8, v41
s_lshl_b32 s{u0}, s{sTeam}, 9
s_add_u32 s{u0}, s{u0}, {L_PD}
v_lshl_add_u32 v{vPD}, v{vL31}, 2, s{u0}
s_lshl_b32 s{u0}, s{sH}, 7
s_add_u32 s{u0}, s{u0}, {L_WX}
v_lshl_add_u32 v{vWX}, v47, 4, s{u0}""")
    def grp_out(a):
        a(f"""s_mul_i32 s{u0}, s{sB}, 98
s_add_u32 s{u0}, s{u0}, s{sRow0}
s_lshl_b32 s{u0}, s{u0}, 8
s_lshl_b32 s{u1}, s{sH}, 7
s_add_u32 s{u0}, s{u0}, s{u1}
v_mul_u32_u24 v40, 1792, v47
v_lshl_add_u32 v40, v{vL31}, 2, v40
v_add_u32 v{vOutA}, s{u0}, v40
s_cmp_ge_u32 s{sTeam}, 2
s_cselect_b32 s{u1}, {BIG}, 0
v_mul_lo_u32 v40, v47, s{u1}
v_add_u32 v{vOutB}, 3584, v{vOutA}
v_add_u32 v{vOutB}, v{vOutB}, v40
s_mov_b64 {S2(sSwap)}, {S2(sLo)}""")
    def grp_sel(a):
        a(f"v_mov_b32 v46, 0x3f80\ns_mov_b32 s{tp}, 1\ns_mov_b32 s{tp+1}, 16")
        for g in range(4):
            for j in range(4):
                a(f"v_cndmask_b32 v{SEL+4*g+j}, 0, v46, {S2(tp)}")
                if (g,j)!=(3,3): a(f"s_lshl_b64 {S2(tp)}, {S2(tp)}, {1 if j<3 else 5}")
    def nib(vals, w): return hex(sum(v<<(w*i) for i,v in enumerate(vals)))
    def grp_scan(a):
        a(f"""v_and_b32 v40, 3, v{vLane}
v_bfe_u32 v41, v{vLane}, 2, 2
v_lshl_add_u32 v42, v40, 2, v41
v_lshlrev_b32 v{vT}, 2, v42
s_mov_b32 s{u0}, 0xc000c000
s_mov_b32 s{u0+1}, 0xc000c000
v_cndmask_b32 v{vMin}, 64, 0, {S2(u0)}
v_lshlrev_b32 v40, 3, v40
s_mov_b32 s{u0}, {nib(TB,8)}
v_bfe_u32 v42, s{u0}, v40, 8
s_movk_i32 s{u0}, {L_IDX//4}
v_lshl_add_u32 v{vTB}, v42, 5, s{u0}
s_mov_b32 s{u0}, {nib([c//32 for c in TCAP],8)}
v_bfe_u32 v42, s{u0}, v40, 8
v_lshlrev_b32 v{vCap}, 5, v42
s_mov_b32 s{u0}, 0xf000f000
s_mov_b32 s{u0+1}, 0xf000f000
v_cndmask_b32 v{vM31}, 0, 31, {S2(u0)}
s_lshl_b32 s{u0}, s{sH}, 3
s_add_u32 s{u0}, s{u0}, s{sTeam}
s_lshl_b32 s{u0}, s{u0}, 2
v_lshl_add_u32 v{vBP}, v47, 4, s{u0}
v_mov_b32 v{vC0p}, {7*256+48}
v_mov_b32 v{vC1p}, {(7*256+48)^128}
v_mov_b32 v{vBig}, {BIG}
s_lshl_b32 s{u0}, s{sTeam}, 3
s_lshr_b32 s{u0}, {nib(TB,8)}, s{u0}
s_and_b32 s{u0}, s{u0}, 0xff
s_lshl_b32 s{u0}, s{u0}, 7
s_add_u32 s{sTBb}, s{u0}, {L_IDX}
v_lshl_add_u32 v{vIdx}, v47, 4, s{sTBb}
s_movk_i32 s{u0}, {AS}
v_mad_u32_u24 v40, v47, s{u0}, s{u0}
v_lshl_add_u32 v40, v{vL31}, 2, v40
v_add_u32 v{vX}, s{sTBb}, v40""")
    def grp_zero(a):
        a(f"""v_mov_b32 v40, 0
v_mov_b32 v41, 0
v_mov_b32 v42, 0
v_mov_b32 v43, 0
s_lshl_b32 s{u0}, s{sW}, 12
v_add_u32 v44, s{u0}, v14
ds_write_b32 v{vL4}, v40 offset:{L_CNT}""")
        for m in range(4): a(f"ds_write_b128 v44, v[40:43] offset:{L_S+m*1024}")
    def grp_pa(a):
        a(f"s_cmp_eq_u32 s{sW}, {opt.get('PAW','3')}\ns_cbranch_scc1 {E}_pa")
        a.label(f"{E}_pad")
    def pablk():
        a.label(f"{E}_pa")
        a(f"""v_mov_b32 v46, 0x3f80
v_bfe_u32 v40, v{vLane}, 4, 1
v_bfe_u32 v41, v{vLane}, 1, 3
v_and_b32 v42, 1, v{vLane}
v_lshlrev_b32 v43, 11, v40
v_lshl_add_u32 v43, v41, 8, v43
v_lshl_add_u32 v43, v42, 7, v43
v_and_b32 v44, 3, v41
v_lshl_add_u32 v43, v44, 4, v43
v_xor_b32 v40, v40, v42
v_lshl_add_u32 v40, v40, 4, v41""")
        for d in range(4):
            a(f"v_cmp_eq_u32 vcc, {2*d}, v40\nv_cndmask_b32 v{36+d}, 0, v46, vcc")
            if d < 3: a(f"v_cmp_eq_u32 vcc, {2*d+1}, v40\nv_cndmask_b32 v{36+d}, v{36+d}, 1.0, vcc")
        a(f"ds_write_b128 v43, v[36:39] offset:{L_PA}\ns_branch {E}_pad")
    outl.append(pablk)
    GR=dict(a=grp_a, m=grp_mi, o=grp_out, s=grp_sel, c=grp_scan, z=grp_zero, p=grp_pa)
    SO=opt.get('SO','zasc.p.mo').split('.')
    grp_base(a)
    for g in SO[0]: GR[g](a)
    a(f"""v_and_b32 v12, 1, v0
v_cmp_eq_u32 vcc, 0, v12
v_mul_u32_u24 v6, 1600, v6
s_mov_b32 s{sBias}, {-DBIAS*32}
s_waitcnt vmcnt({younger('tab')})""")
    ts("tab")
    at('1')
    a(f"""v_lshrrev_b32 v10, 16, v9
v_and_b32 v9, 0xffff, v9
v_cndmask_b32 v11, 0, v10, vcc
v_add_u32 v9, v9, v6""")
    wave_scan(a, 11)
    a(f"""v_readlane_b32 s{t0}, v11, 63
v_sub_u32 v11, v11, v10
v_sub_u32 v13, v10, v12
s_sub_u32 s{t1}, s{t0}, s{sWin}
s_min_u32 s{sN}, s{t1}, s{sCap}
s_sub_u32 s{sMore}, s{t1}, s{sN}
v_subrev_u32 v11, s{sWin}, v11
v_sub_u32 v9, v9, v11
v_add_lshl_u32 v11, v11, v12, 2
s_cmp_lg_u32 s{t0}, s{sN}
s_cbranch_scc1 {E}_exp
v_add_u32 v7, s{sRPb}, v11""")
    for k in range(8): a(f"v_cmpx_lt_i32 vcc, {2*k}, v13\nds_write_b32 v7, v9 offset:{L_RP+8*k}")
    a(f"v_cmpx_lt_i32 vcc, 16, v13\ns_cbranch_execnz {E}_exp2")
    a.label(f"{E}_expd")
    def expblk():
        a.label(f"{E}_exp2")
        a("v_add_u32 v12, 16, v12\nv_add_u32 v11, 64, v11")
        a.label(f"{E}_exp")
        a(f"s_lshl_b32 s{t1}, s{sN}, 2")
        a.label(f"{E}_expl")
        a(f"""v_cmpx_lt_u32 vcc, v12, v10
s_cbranch_execz {E}_expd
v_min_u32 v7, s{t1}, v11
v_add_u32 v7, s{sRPb}, v7
ds_write_b32 v7, v9 offset:{L_RP}
v_add_u32 v12, 2, v12
v_add_u32 v11, 8, v11
s_branch {E}_expl""")
    outl.append(expblk)
    a(f"s_mov_b64 exec, -1\nv_add_u32 v7, s{sRPb}, v{vL4}")
    for i in range(4): a(f"ds_read_b32 v{REC+4*i+3}, v7 offset:{L_RP+i*256}")
    for i in range(5):
        a(f"s_sub_u32 s{t0}, s{sN}, {64*i}\nv_cmp_gt_i32 {S2(sV+2*i)}, s{t0}, v{vLane}")
    a(f"s_mov_b32 s{t1}, {OFF_REC}")
    def recld(i, cnt=True):
        p=REC+4*i+3
        if i: a(f"v_add3_u32 v{p}, v{p}, v{vLane}, s{t0}" if 64*i>64 else f"v_add3_u32 v{p}, v{p}, v{vLane}, 64")
        else: a(f"v_add_u32 v{p}, v{p}, v{vLane}")
        a(f"""v_mul_u32_u24 v{p-3}, 12, v{p}
v_cndmask_b32 v{p-3}, v15, v{p-3}, {S2(sV+2*i)}
buffer_load_dwordx3 {R(p-3,3)}, v{p-3}, {S4(sWS)}, s{t1} offen""")
        if cnt: vm.append('rec')
    for i in range(4):
        if i>1: a(f"s_movk_i32 s{t0}, {64*i}")
        a(f"s_waitcnt lgkmcnt({3-i})"); recld(i)
    def fifth(tag, fn):
        a(f"s_cmp_gt_u32 s{sN}, 256\ns_cbranch_scc1 {E}_5{tag}")
        a.label(f"{E}_5{tag}d")
        def blk():
            a.label(f"{E}_5{tag}"); fn(); a(f"s_branch {E}_5{tag}d")
        outl.append(blk)
    def f5a():
        a(f"ds_read_b32 v{REC+19}, v7 offset:{L_RP+1024}\ns_movk_i32 s{t0}, 256\ns_waitcnt lgkmcnt(0)"); recld(4, False)
        a(f"v_lshl_add_u32 v{REC+19}, v{REC+19}, 5, s{sBias}")
    fifth('a', f5a)
    ts("rec")
    at('2')
    for i in range(4): a(f"v_lshl_add_u32 v{REC+4*i+3}, v{REC+4*i+3}, 5, s{sBias}")
    for g in SO[1]: GR[g](a)
    a(f"""s_lshl_b32 s{t0}, s{sH}, 14
s_add_u32 s{t1}, s{t0}, {L_WD}
v_add_u32 v12, s{t1}, v14
v_lshlrev_b32 v10, 4, v0
s_waitcnt vmcnt({min(younger('h'),younger('wd'))})
v_alignbit_b32 v20, v21, v20, v22
v_lshrrev_b32 v21, v22, v21
v_lshlrev_b32 v24, 16, v20
v_and_b32 v25, s{sHi16}, v20
v_lshlrev_b32 v26, 16, v21
v_mov_b32 v27, 0
v_cmp_gt_u32 vcc, 128, v0
s_mov_b64 exec, vcc
ds_write_b128 v10, v[24:27] offset:{L_POSD}
s_mov_b64 exec, -1
s_waitcnt lgkmcnt(0)
s_barrier""")
    ts("b1")
    def aread(k, base=None):
        d=TT+4*k if base is None else base[k]
        if k == 0: a(f"ds_read_b128 {R(d,4)}, v{vA}")
        else: a(f"v_xor_b32 v9, {32*k}, v{vA}\nds_read_b128 {R(d,4)}, v9")
    ZZ=(Z0,Z1)
    BF=[16,24,32,100,108]
    late=[]
    for g in SO[2]: late+=cap(GR[g])
    for k in range(4):
        aread(k)
        for z in range(2): a(f"ds_read_b128 {R(BF[k]+4*z,4)}, v12 offset:{(2*k+z)*1024}")
    for k in range(8):
        a(f"s_waitcnt lgkmcnt({9 if k<5 else 3*(7-k)})")
        for z in range(2): mfma(a, ZZ[z], TT+4*k, BF[k%5]+4*z, ZZ[z] if k else None)
        if k<4:
            aread(k+4)
            for z in range(2): a(f"ds_read_b128 {R(BF[(k+4)%5]+4*z,4)}, v12 offset:{(2*k+8+z)*1024}")
        n=(len(late)+(7-k))//(8-k)
        for l in late[:n]: a(l)
        late=late[n:]
    a(f"s_waitcnt vmcnt({younger('sm')})")
    for z in range(2):
        D=ZZ[z]
        for r in range(0,16,2): a(f"v_pk_mul_f32 {R(D+r,2)}, {R(D+r,2)}, {S2(sL2E)}")
        for hh in range(2):
            o=(PP,F23)[hh]+4*z
            for d in range(4): a(f"v_cvt_pk_bf16_f32 v{o+d}, v{D+8*hh+2*d}, v{D+8*hh+2*d+1}")
            a(f"v_bfi_b32 v{o+3}, s{sHi16}, v{ZQ+2+z}, v{o+3}")
    for r in range(4): a(f"v_mov_b32 v{ZQ+r}, 0")
    a(f"v_mov_b32 v46, 1\nv_mov_b32 v45, s{sMore}\nv_lshlrev_b32 v44, 4, v{vLane}\ns_waitcnt vmcnt({younger('rec')})")
    ts("recw")
    def rank(i):
        r=REC+4*i
        a(f"""v_lshrrev_b32 v{CA+i}, 25, v{r}
v_lshlrev_b32_sdwa v{POSR+4*i}, 4, v{r} dst_sel:DWORD dst_unused:UNUSED_PAD src0_sel:DWORD src1_sel:BYTE_3
v_and_b32 v{CA+i}, 60, v{CA+i}
s_mov_b64 exec, {S2(sV+2*i)}
ds_add_rtn_u32 v{RANK+i}, v{CA+i}, v46 offset:{L_CNT}
s_mov_b64 exec, -1
ds_read_b128 {R(POSR+4*i,4)}, v{POSR+4*i} offset:{L_POSD}""")
    def pre(i):
        r=REC+4*i
        a(f"""v_bfe_u32 v{rC0+i}, v{r}, 16, 12
v_mad_u32_u16 v{r+3}, v{r+2}, 32, v{r+3} op_sel:[1,0,0,0]
v_mad_u32_u16 v{r}, v{r}, 8, 0
v_xor_b32 v{rC1+i}, 128, v{rC0+i}
v_add_u32 v{rE1+i}, 16, v{r+3}""")
    def diffs(I):
        for i in I:
            r=REC+4*i; d=POSR+4*i
            a(f"v_dot2_f32_bf16 v{d}, v{r+1}, s{sKlo}, v{d}\nv_dot2_f32_bf16 v{d+1}, v{r+1}, s{sKhi}, v{d+1}\nv_dot2_f32_bf16 v{d+2}, v{r+2}, s{sKlo}, v{d+2}")
        for i in I:
            d=POSR+4*i
            a(f"v_cvt_pk_bf16_f32 v{d+1}, v{d+2}, v{d+1}\nv_cvt_pk_bf16_f32 v{d+2}, v{d}, 0")
        for i in I:
            d=POSR+4*i; a(f"v_dot2_f32_bf16 v{d+3}, v{d+1}, v{d+1}, 0")
        for i in I:
            d=POSR+4*i; a(f"v_dot2_f32_bf16 v{d+3}, v{d+2}, v{d+2}, v{d+3}")
        for i in I:
            d=POSR+4*i; a(f"v_cvt_pk_bf16_f32 v{d}, v{d}, v{d+3}")
    for i in range(4): rank(i)
    def f5b():
        rank(4); pre(4); a("s_waitcnt lgkmcnt(0)"); diffs([4])
    fifth('b', f5b)
    a(f"s_mov_b64 exec, 1\nds_or_b32 v{ZQ}, v45 offset:{L_CNT+64}\ns_mov_b64 exec, -1")
    at('3', 44)
    PT=(234,235,237); PQ=(238,243,244); pst=dict(t=False,q=False,r=False)
    def pft(pos):
        for sp in (PFT.split('+') if PFT else []):
            p,kind,lim=sp.split(',')
            if p!=pos: continue
            hi_only = kind.isupper(); kind=kind.lower()
            if hi_only: a(f"s_cmp_lt_u32 s{sW}, 4\ns_cselect_b32 s{t0}, 0, -1\ns_mov_b32 s{t0+1}, s{t0}")
            for i in range(3):
                r=REC+4*i; t=PT[i]; q=PQ[i]; d=vRC[1]
                if not pst['t']: a(f"v_and_b32 v{t}, 12, v{CA+i}")
                if lim=='j':
                    assert not pst['r']; a(f"v_cmp_eq_u32 vcc, 0, v{t}")
                else:
                    if not pst['r']: a(f"v_lshl_add_u32 v{t}, v{t}, 8, v{RANK+i}")
                    if '-' in lim:
                        lo,hi=map(int,lim.split('-')); a(f"v_subrev_u32 v251, {lo}, v{t}\nv_cmp_gt_u32 vcc, {hi-lo}, v251")
                    else: a(f"v_cmp_gt_u32 vcc, {lim}, v{t}")
                if hi_only: a(f"s_and_b64 vcc, vcc, {S2(t0)}")
                if kind!='q': V('pf', f"v_cndmask_b32 v251, v{vBig}, v{r+3}, vcc\nbuffer_load_dword v{d}, v251, {S4(sEA)}, 0 offen")
                if kind!='e': V('pf', f"v_lshlrev_b32 v{q}, 5, v{r}\nv_cndmask_b32 v{q}, v{vBig}, v{q}, vcc\nbuffer_load_dword v{d}, v{q}, {S4(sWS)}, 0 offen\nbuffer_load_dword v{d}, v{q}, {S4(sWS)}, 0 offen offset:128")
            pst['t']=True
            if kind!='e': pst['q']=True
            if lim!='j': pst['r']=True
    PA_=PFT and any(x[0]=='a' for x in PFT.split('+'))
    if PA_:
        for i in range(3): pre(i)
        pft('a'); pre(3)
    else:
        for i in range(4): pre(i)
    a("s_waitcnt lgkmcnt(0)")
    pft('b')
    DB=opt.get('DB','1')=='1'
    if DB: diffs(range(4))
    a(f"s_barrier")
    ts("b2")
    a(f"""ds_read_b32 v21, v{vT} offset:{L_CNT}
ds_read_b32 v22, v{ZQ} offset:{L_CNT+64}""")
    pft('c')
    if not DB: diffs(range(4))
    a(f"""s_add_u32 s{t1}, s{sTeam}, 4
s_add_u32 s{t2}, s{sTeam}, 8
s_add_u32 s{t3}, s{sTeam}, 12
s_waitcnt lgkmcnt(1)
v_max_u32 v23, v21, v{vMin}
v_sub_u32 v31, v{vTB}, v23
v_sub_u32 v38, v23, v21
v_add_u32_dpp v29, v23, v23 row_shr:4 row_mask:0xf bank_mask:0xf bound_ctrl:1
v_add_u32 v37, v31, v21
v_lshlrev_b32 v{vFk}, 3, v{vLane}
v_add_u32_dpp v29, v29, v29 row_shr:8 row_mask:0xf bank_mask:0xf bound_ctrl:1
v_add_u32 v30, v29, v31
ds_write_b32 v{vT}, v30 offset:{L_CNT+128}""")
    for i in range(4): a(f"ds_read_b32 v{rST+i}, v{CA+i} offset:{L_CNT+128}")
    a(f"""v_cmp_gt_u32 vcc, v29, v{vCap}
v_sub_u32 v39, 0, v29
v_add_u32 v37, v37, v29
v_and_b32 v39, v{vM31}, v39
v_add_u32 v38, v38, v39
s_cbranch_vccnz {E}_retry
ds_bpermute_b32 v45, v{vBP}, v37
ds_bpermute_b32 v46, v{vBP}, v38
v_readlane_b32 s{sCnt}, v29, s{sTeam}
v_readlane_b32 s{sD1}, v29, s{t1}
v_readlane_b32 s{sD2}, v29, s{t2}
v_readlane_b32 s{sNT}, v29, s{t3}
s_waitcnt lgkmcnt(2)""")
    ts("_gsc")
    def blkw(i):
        r=REC+4*i; d=POSR+4*i; b=rST+i
        a(f"""s_mov_b64 exec, {S2(sV+2*i)}
ds_write_b32 v{b}, v{r}
ds_write2st64_b32 v{b}, v{d}, v{d+1} offset0:{AU} offset1:{2*AU}
ds_write2st64_b32 v{b}, v{rC0+i}, v{rC1+i} offset0:{3*AU} offset1:{4*AU}
ds_write2st64_b32 v{b}, v{r+3}, v{rE1+i} offset0:{5*AU} offset1:{6*AU}""")
    for i in range(4): a(f"v_add_lshl_u32 v{rST+i}, v{rST+i}, v{RANK+i}, 2")
    for i in range(4):
        blkw(i)
        if i==1: a("s_waitcnt lgkmcnt(8)")
    a("s_mov_b64 exec, -1")
    def f5d():
        a(f"ds_read_b32 v{rST+4}, v{CA+4} offset:{L_CNT+128}\ns_waitcnt lgkmcnt(0)\nv_add_lshl_u32 v{rST+4}, v{rST+4}, v{RANK+4}, 2"); blkw(4); a("s_mov_b64 exec, -1")
    fifth('d', f5d)
    ts("_blk")
    pft('d')
    clamp=''
    if SAFE: clamp=''.join(f"s_min_i32 s{x}, s{x}, 64\ns_max_i32 s{x}, s{x}, {lo}\n" for x,lo in ((sCnt,0),(sD1,0),(sD2,0),(sD3,-1)))
    a(f"""s_add_u32 s{sNT}, s{sNT}, 31
s_lshr_b32 s{sNT}, s{sNT}, 5
s_sub_u32 s{sCnt}, s{sCnt}, 1
s_lshr_b32 s{sCnt}, s{sCnt}, 5
s_sub_u32 s{sD1}, s{sD1}, 1
s_lshr_b32 s{sD1}, s{sD1}, 5
s_sub_u32 s{sD2}, s{sD2}, 1
s_lshr_b32 s{sD2}, s{sD2}, 5
s_sub_u32 s{sD3}, s{sNT}, s{sD2}
s_sub_u32 s{sD3}, s{sD3}, 2
s_sub_u32 s{sD2}, s{sD2}, s{sD1}
s_sub_u32 s{sD2}, s{sD2}, 1
s_sub_u32 s{sD1}, s{sD1}, s{sCnt}
s_sub_u32 s{sD1}, s{sD1}, 1
{clamp}s_add_u32 s{t1}, s{sNT}, s{sH}
s_lshl_b32 s{t2}, s{t1}, 7
s_add_u32 s{t0}, s{sTBb}, s{t2}
s_and_b32 s{t1}, s{t1}, 1
s_lshl_b32 s{t1}, s{t1}, 8
s_add_u32 s{t1}, s{t1}, {W2ROW0*8}
v_add_u32 v34, s{t0}, v{vL4}
v_add_u32 v35, s{t1}, v{vFk}
v_add_lshl_u32 v45, v45, v{vL31}, 2
s_mov_b64 exec, {S2(sLo)}
ds_write_b32 v34, v35
s_mov_b64 exec, -1""")
    def padw():
        a(f"""ds_write_b32 v45, v{ZQ}
ds_write2st64_b32 v45, v{ZQ}, v{ZQ} offset0:{AU} offset1:{2*AU}
ds_write2st64_b32 v45, v{vC0p}, v{vC1p} offset0:{3*AU} offset1:{4*AU}
ds_write2st64_b32 v45, v{vBig}, v{vBig} offset0:{5*AU} offset1:{6*AU}""")
    a(f"v_cmp_lt_u32 {S2(tp)}, 32, v46\nv_cmpx_gt_u32 vcc, v46, v{vL31}")
    padw()
    a(f"s_cmp_lg_u64 {S2(tp)}, 0\ns_cbranch_scc1 {E}_padl")
    a.label(f"{E}_padd")
    def padblk():
        a.label(f"{E}_padl")
        a(f"v_subrev_u32 v46, 32, v46\nv_add_u32 v45, 128, v45\nv_cmpx_gt_i32 vcc, v46, v{vL31}\ns_cbranch_execz {E}_padd")
        padw()
        a(f"s_branch {E}_padl")
    outl.append(padblk)
    a("s_mov_b64 exec, -1")
    ts("_pad")
    a(f"v_readfirstlane_b32 s{sMore}, v22\ns_waitcnt vmcnt({min(younger(x) for x in ('sm2','w1','wd'))}) lgkmcnt(0)\ns_barrier")
    ts("b3")
    def qload(u, r):
        if SAFE: a(f"v_and_b32 v{QB[u]+r}, 0xffff8, v{QB[u]+r}")
        if opt.get('Q0'): a(f"buffer_load_dword v{QB[u]+r}, v{ZQ}, {S4(sQ)}, 0 offen")
        else: a(f"buffer_load_dword v{QB[u]+r}, v{QB[u]+r}, {S4(sQ)}, 0 offen")
    def eaload(u, v): a(f"buffer_load_dwordx4 {R(EA[u],4)}, v{ZQ if opt.get('E0') else v}, {S4(sEA)}, 0 offen")
    for u in range(2):
        a(f"ds_read_b32 v{6+u}, v{vX} offset:{4*AS+u*128}")
        for q in range(4): a(f"ds_read_b128 {R(QB[u]+4*q,4)}, v{vIdx} offset:{u*128+q*32}")
    a(f"ds_read2st64_b32 {R(vRC[0],2)}, v{vX} offset1:{2*AU}")
    a("s_waitcnt lgkmcnt(10)"); eaload(0, 6)
    for r in range(16):
        if r%4==0: a(f"s_waitcnt lgkmcnt({9-r//4})")
        qload(0, r)
    a("s_waitcnt lgkmcnt(0)"); eaload(1, 7)
    a(f"ds_read_b128 {R(PA,4)}, v{vRC[0]+1} offset:{L_PA}")
    a(f"s_lshl_b32 s{t0}, s{sH}, 14\ns_add_u32 s{t0}, s{t0}, {L_W1}\nv_lshl_add_u32 v13, v{vLane}, 4, s{t0}\nv_add_u32 v{vX}, 128, v{vX}")
    for f in range(12): a(f"ds_read_b128 {R(Z0+4*f,4)}, v13 offset:{f*1024}")
    for r in range(16): qload(1, r)
    for r in range(8): a(f"v_mov_b32 v{SF+r}, 0")
    def patch(u): a(f"v_bfi_b32 v{PA+3}, s{sHi16}, v{vRC[u]}, v{PA+3}")
    a(f"s_cmp_eq_u32 s{sFirst}, 0\ns_waitcnt lgkmcnt(10)"); patch(0)
    for f in range(12,16): a(f"ds_read_b128 {R(Z0+4*f,4)}, v13 offset:{f*1024}")
    a(f"s_cbranch_scc1 {E}_noh")
    for k in range(8):
        a(f"s_waitcnt lgkmcnt({14-2*k})")
        for z in range(2): mfma(a, YY+16*z, TT+4*k, Z0+8*k+4*z, YY+16*z if k else None)
    a.label(f"{E}_noh")
    a("s_waitcnt lgkmcnt(0)")
    mfma(a, TT, ZQ, ZQ, None); mfma(a, TT+16, ZQ, ZQ, None)
    mfma(a, Z0, PA, PP, None)
    a(f"s_cbranch_scc1 {E}_noh2")
    for r in range(0,32,2): a(f"v_pk_mul_f32 {R(YY+r,2)}, {R(YY+r,2)}, {S2(sL2E)}")
    a.label(f"{E}_noh2")
    ts("pre")
    a("s_waitcnt vmcnt(17)")
    mfma(a, Z0, EA[0], WA, Z0)
    for g in range(4): mfma(a, Z0, SEL+4*g, QB[0]+4*g, Z0)
    def seg(i):
        T=TT+16*(i>>1); M=(M0,M1)[i>>1]+4*(i&1)
        mfma(a, T, M, SF+4*(i&1), T)
    def trans(op, Zs, lo, hi):
        if opt.get('NOTR'): return
        for r in range(lo, hi):
            if op == 'exp': a(f"v_exp_f32 v{EE+r}, {SG}v{Zs+r}")
            else: a(f"v_rcp_f32 v{EE+r}, v{EE+r}")
    def pkadd():
        for r in range(0,16,2): a(f"v_pk_add_f32 {R(EE+r,2)}, {R(EE+r,2)}, {S2(sOne)}")
    def pkmul(Zs):
        for r in range(0,16,2): a(f"v_pk_mul_f32 {R(EE+r,2)}, {R(EE+r,2)}, {R(Zs+r,2)}")
    def body(u):
        nu=u^1
        a(f"ds_read2st64_b32 {R(vRC[nu],2)}, v{vX} offset1:{2*AU}\nds_read_b32 v{vE}, v{vX} offset:{4*AS+128}")
        mfma(a, Z1, EA[u], WA+4, QB[u]); trans('exp', Z0, 0, 5)
        mfma(a, Z1, PA, PP+4, Z1); trans('exp', Z0, 5, 7)
        a(f"s_waitcnt lgkmcnt(0)\nds_read_b128 {R(PA,4)}, v{vRC[nu]+1} offset:{L_PA}")
        for q in range(4): a(f"ds_read_b128 {R(QB[u]+4*q,4)}, v{vIdx} offset:{(u+2)*128+q*32}")
        eaload(u, vE)
        trans('exp', Z0, 7, 10)
        seg(0); trans('exp', Z0, 10, 16)
        pkadd()
        seg(1); trans('rcp', Z0, 0, 2)
        a(f"s_waitcnt lgkmcnt(0)")
        rr=2
        for r in range(16):
            qload(u, r)
            if r in (1,3,5): trans('rcp', Z0, rr, rr+1); rr+=1
            if r == 5: seg(2)
            if r in (7,9,11,13,15): trans('rcp', Z0, rr, rr+1); rr+=1
        seg(3); trans('rcp', Z0, 10, 16)
        pkmul(Z0); patch(nu)
        for d in range(8): a(f"v_cvt_pk_bf16_f32 v{M0+d}, v{EE+2*d}, v{EE+2*d+1}")
        a(f"ds_write_b16 v{vSa}, v{ZQ}\nds_write_b16 v{vSa}, v{ZQ} offset:64")
        a(f"""v_xor_b32 v{vSa}, v{vRC[u]+1}, v{vSbase}
v_cndmask_b32 v{vR2}, v{vRC[u]}, 1.0, {S2(sLo)}
ds_write_b16 v{vSa}, v{vRC[u]} offset:64
ds_write_b16_d16_hi v{vSa}, v{vR2}""")
        mfma(a, Z0, PA, PP, None); trans('exp', Z1, 0, 2)
        a(f"ds_read_b128 {R(SF,4)}, v{vSrd[0]}\nds_read_b128 {R(SF+4,4)}, v{vSrd[1]}")
        trans('exp', Z1, 2, 5)
        a("s_waitcnt vmcnt(17)")
        mfma(a, Z0, EA[nu], WA, Z0); trans('exp', Z1, 5, 10)
        mfma(a, Z0, SEL, QB[nu], Z0); trans('exp', Z1, 10, 16)
        pkadd()
        mfma(a, Z0, SEL+4, QB[nu]+4, Z0); trans('rcp', Z1, 0, 5)
        mfma(a, Z0, SEL+8, QB[nu]+8, Z0); trans('rcp', Z1, 5, 10)
        mfma(a, Z0, SEL+12, QB[nu]+12, Z0); trans('rcp', Z1, 10, 16)
        pkmul(Z1)
        if u == 1: a(f"v_add_u32 v{vIdx}, 256, v{vIdx}")
        a(f"v_add_u32 v{vX}, 128, v{vX}")
        a(f"s_sub_u32 s{sCnt}, s{sCnt}, 1")
        for d in range(8): a(f"v_cvt_pk_bf16_f32 v{M1+d}, v{EE+2*d}, v{EE+2*d+1}")
    def flush(final):
        for q in range(4): a(f"ds_read_b128 {R(EE+4*q,4)}, v{vWX} offset:{q*32}")
        a("s_waitcnt lgkmcnt(4)")
        for i in (0,2,1,3): seg(i)
        if not final:
            a(f"v_xor_b32 v{vSrd[0]}, 0x800, v{vSrd[0]}\nv_xor_b32 v{vSrd[1]}, 0x800, v{vSrd[1]}")
            a(f"ds_read_b128 {R(SF,4)}, v{vSrd[0]}\nds_read_b128 {R(SF+4,4)}, v{vSrd[1]}")
            a(f"s_mov_b64 exec, {S2(sSwap)}")
            for k in range(8): a(f"v_mov_b32 v{PP+k}, v{F23+k}")
            a(f"""s_mov_b64 exec, -1
s_not_b64 {S2(sSwap)}, {S2(sSwap)}
s_mov_b32 s{sCnt}, s{sD1}
s_mov_b32 s{sD1}, s{sD2}
s_mov_b32 s{sD2}, s{sD3}
s_mov_b32 s{sD3}, -1
s_setprio 0""")
        for q in range(1,4): a(f"v_xor_b32 v{11+q}, {32*q}, v{vMI}")
        for d in range(16): a(f"v_cvt_pk_bf16_f32 v{TT+d}, v{TT+2*d}, v{TT+2*d+1}")
        a(f"s_mov_b64 exec, {S2(sMIm)}")
        for q in range(4): a(f"ds_write_b128 v{11+q if q else vMI}, {R(TT+4*q,4)}")
        a(f"s_mov_b64 exec, -1\ns_waitcnt lgkmcnt({4 if final else 6})")
        for q in range(4): mfma(a, Z1, EE+4*q, TT+4*q, Z1 if q else None)
        if not final:
            mfma(a, TT+16, ZQ, ZQ, None); mfma(a, TT, ZQ, ZQ, None)
            a(f"v_add_u32 v{vMI}, 1792, v{vMI}\nv_xor_b32 v{vMI}, 64, v{vMI}")
        a(f"s_mov_b64 exec, {S2(sLo)}\nds_add_f32 v{vPD}, v{Z1}\ns_mov_b64 exec, -1")
        if not final: a(f"v_add_u32 v{vPD}, 128, v{vPD}")
    ts("loop")
    a("s_nop 7\ns_nop 1\n.p2align 3")
    a.label(f"{E}_l0")
    body(0); a(f"s_cbranch_scc1 {E}_ev0")
    a.label(f"{E}_l1")
    body(1); a(f"s_cbranch_scc0 {E}_l0")
    for u in (1,0):
        a.label(f"{E}_ev{u}")
        a(f"s_cmp_eq_u32 s{sD1}, -1\ns_cbranch_scc1 {E}_tail")
        flush(False)
        a(f"s_branch {E}_l{u^1}")
    a.label(f"{E}_tail")
    ts("tail")
    W2B=PP
    a(f"v_lshlrev_b32 v14, 4, v{vLane}\ns_add_u32 s{t1}, s{sW2}, 4096")
    for f in range(8): a(f"buffer_load_dwordx4 {R(W2B+4*f,4)}, v14, {S4(sWS)}, s{sW2 if f<4 else t1} offen offset:{(f&3)*1024}")
    hreg={}
    n=0
    for r in range(16):
        if r&7 == 7: continue
        hreg[r]=Z0+n; n+=1
        a(f"buffer_load_dword v{hreg[r]}, v{vOutA if r<8 else vOutB}, {S4(sHH)}, 0 offen offset:{(r&7)*256}")
    flush(True)
    a("s_waitcnt lgkmcnt(0)\ns_barrier")
    ts("bar")
    for k in range(8): aread(k)
    W2R=[QB[0]+4*f for f in range(8)]+[W2B+4*f for f in range(8)]
    a("s_waitcnt vmcnt(14)")
    for k in range(8):
        a(f"s_waitcnt lgkmcnt({7-k})")
        for z in range(2): mfma(a, YY+16*z, TT+4*k, W2R[2*k+z], YY+16*z)
    a(f"s_cmp_lg_u32 s{sMore}, 0\ns_cbranch_scc1 {E}_more")
    a("s_waitcnt vmcnt(0)")
    a(f"s_cmp_lt_u32 s{sW}, 4\ns_cbranch_scc1 {E}_nopos\ns_cmp_eq_u32 s{sW}, 7\ns_cbranch_scc1 {E}_nopos")
    srd(a, sPOS, pOUT, 150000, 6400000)
    a(f"v_subrev_u32 v6, 256, v0\nv_lshlrev_b32 v7, 1, v6\ns_movk_i32 s{t0}, 0x5556")
    for x in range(2):
        a(f"""v_add_u32 v8, {x}, v7
v_mul_u32_u24 v9, s{t0}, v8
v_lshrrev_b32 v9, 16, v9
v_mul_u32_u24 v10, 3, v9
v_sub_u32 v8, v8, v10
v_mul_u32_u24 v10, 147, v9
v_lshrrev_b32 v10, 10, v10
v_mul_u32_u24 v11, 7, v10
v_sub_u32 v9, v9, v11
v_add_u32 v11, 5, v10
v_lshrrev_b32 v11, 4, v11
v_add_u32 v10, v10, v11
v_lshl_add_u32 v9, v10, 3, v9
v_lshl_add_u32 v9, v9, 2, v8
v_lshlrev_b32 v9, 2, v9
ds_read_b32 v{12+2*x}, v9 offset:{L_PD+4}
ds_read_b32 v{13+2*x}, v9 offset:{L_POSD}""")
    a(f"""s_mul_i32 s{t1}, s{sB}, 588
v_lshl_add_u32 v7, v6, 2, s{t1}
v_cmp_gt_u32 vcc, 147, v6
s_mov_b32 s{t0}, {LN2}
s_waitcnt lgkmcnt(0)
v_fma_f32 v12, v12, s{t0}, v13
v_fma_f32 v14, v14, s{t0}, v15
v_cvt_pk_bf16_f32 v12, v12, v14
s_mov_b64 exec, vcc
buffer_store_dword v12, v7, {S4(sPOS)}, 0 offen
s_mov_b64 exec, -1""")
    a.label(f"{E}_nopos")
    X=QB[0]; HU=TT
    valid=[r for r in range(16) if r&7 != 7]
    for z in range(2):
        for r in valid: a(f"v_exp_f32 v{X+16*z+r}, {SG}v{YY+16*z+r}")
    for z in range(2):
        for r in range(0,16,2): a(f"v_pk_fma_f32 {R(X+16*z+r,2)}, {R(X+16*z+r,2)}, {S2(sL2E)}, {S2(sL2E)}")
    for z in range(2):
        for r in valid: a(f"v_rcp_f32 v{X+16*z+r}, v{X+16*z+r}")
    for r in valid:
        a(f"v_lshlrev_b32 v{HU+r}, 16, v{hreg[r]}\nv_and_b32 v{HU+16+r}, s{sHi16}, v{hreg[r]}")
    for r in range(0,16,2):
        for z in range(2): a(f"v_pk_fma_f32 {R(X+16*z+r,2)}, {R(X+16*z+r,2)}, {R(YY+16*z+r,2)}, {R(HU+16*z+r,2)}")
        for rr in (r,r+1):
            if rr in valid:
                a(f"v_cvt_pk_bf16_f32 v{X+rr}, v{X+rr}, v{X+16+rr}")
                a(f"buffer_store_dword v{X+rr}, v{vOutA if rr<8 else vOutB}, {S4(sOUT)}, 0 offen offset:{(rr&7)*256} {ST}")
    if opt.get('DLY2'):
        a(f"s_movk_i32 s90, {opt['DLY2']}"); a.label("L_k2_dly")
        for i in range(16): a("v_exp_f32 v200, v200")
        a("s_sub_u32 s90, s90, 1\ns_cbranch_scc0 L_k2_dly")
    ts("st"); ts.dump()
    a("s_endpgm")
    a.label(f"{E}_retry")
    a(f"s_lshr_b32 s{sCap}, s{sCap}, 2\ns_branch {E}_again")
    a.label(f"{E}_more")
    a(f"s_mov_b32 s{sFirst}, 0\ns_add_u32 s{sWin}, s{sWin}, s{sN}")
    a.label(f"{E}_again")
    if SAFE: a(f"s_add_u32 s93, s93, 1\ns_cmp_gt_u32 s93, 3000\ns_cbranch_scc1 {E}_end")
    a("s_waitcnt vmcnt(0) lgkmcnt(0)\ns_barrier")
    tabaddr()
    a(f"buffer_load_dword v9, v7, {S4(sWS)}, s{sTabO} offen\ns_branch {E}_round")
    for f in outl: f()
    a.label(f"{E}_end")
    a("s_endpgm")
    gen_k2.names=ts.names
    return a.lines, 256, K2_LDS
```
